```python
import torch

def _softmax(x, axis=-1):
    return torch.softmax(x, dim=axis)

def _gelu(x):
    return torch.nn.functional.gelu(x, approximate='tanh')

def _silu(x):
    return torch.nn.functional.silu(x)

def _sigmoid(x):
    return torch.sigmoid(x)

def _layernorm(x, axis=-1, eps=1e-05):
    m = x.mean(dim=axis, keepdim=True)
    v = x.var(dim=axis, keepdim=True, unbiased=False)
    return (x - m) / torch.sqrt(v + eps)

def _scatter_add(tgt, idx, src, axis=0):
    return tgt.clone().index_add_(axis, idx, src)

def _segment_sum(src, seg, n):
    out = torch.zeros((n,) + src.shape[1:], dtype=src.dtype)
    return out.index_add_(0, seg, src)

def _pad(x, pw):
    flat = tuple((v for pair in reversed(pw) for v in pair))
    return torch.nn.functional.pad(x, flat)
kernel_name = 'adaLN_cond__mha_block__mixer_gmlp__prompt'

def setup_inputs():

    _w = lambda a: (lambda t: t.to(torch.bfloat16) if t.is_floating_point() else t)(torch.as_tensor(a))

    def _A_setup():
        B, S, D, H = (1, 2048, 1024, 32)
        return {'x': _w((lambda *s: torch.randn(*s, dtype=torch.bfloat16) * 0.05)(B, S, D)), 'wqkv': _w((lambda *s: torch.randn(*s, dtype=torch.bfloat16) * 0.05)(D, 3 * D)), 'wo': _w((lambda *s: torch.randn(*s, dtype=torch.bfloat16) * 0.05)(D, D))}
    _A_in = _A_setup()

    def _B_setup():
        B, S, D, F = (1, 2048, 1024, 3584)
        Fh = F // 2
        return {'x': _w((lambda *s: torch.randn(*s, dtype=torch.bfloat16) * 0.05)(B, S, D)), 'w_in': _w((lambda *s: torch.randn(*s, dtype=torch.bfloat16) * 0.8)(D, 2 * Fh)), 'w_sp': _w(0.01 * (lambda *s: torch.randn(*s, dtype=torch.bfloat16) * 0.8)(S, S)), 'b_sp': _w(1.0 + 0.01 * (lambda *s: torch.randn(*s, dtype=torch.bfloat16) * 0.05)(S)), 'w_out': _w((lambda *s: torch.randn(*s, dtype=torch.bfloat16) * 0.05)(Fh, D))}
    _B_in = _B_setup()
    return {'A_x': _A_in['x'], 'A_wqkv': _A_in['wqkv'], 'A_wo': _A_in['wo'], 'B_x': _B_in['x'], 'B_w_in': _B_in['w_in'], 'B_w_sp': _B_in['w_sp'], 'B_b_sp': _B_in['b_sp'], 'B_w_out': _B_in['w_out'], 'c': _w((lambda *s: torch.randn(*s, dtype=torch.bfloat16) * 0.2)(1, 1024) * 8.0), 'w_mod': _w((lambda *s: torch.randn(*s, dtype=torch.bfloat16) * 0.2)(1024, 6 * 1024) * 1024 ** (-0.5) * 8.0)}

def reference(A_x, A_wqkv, A_wo, B_x, B_w_in, B_w_sp, B_b_sp, B_w_out, c, w_mod):

    def _A_ref(x, wqkv, wo):
        B, S, D = x.shape
        H = 32
        Dh = D // H
        qkv = (lambda x, *d: x.permute(*d))((x @ wqkv).reshape(B, S, 3, H, Dh), 2, 0, 3, 1, 4)
        q, k, v = (qkv[0], qkv[1], qkv[2])
        scores = torch.einsum('bhqd,bhkd->bhqk', q, k) * Dh ** (-0.5)
        p = _softmax(scores, axis=-1)
        o = torch.einsum('bhqk,bhkd->bhqd', p, v)
        return (lambda x, *d: x.permute(*d))(o, 0, 2, 1, 3).reshape(B, S, D) @ wo

    def _B_ref(x, w_in, w_sp, b_sp, w_out):
        B, S, D = x.shape
        F = w_in.shape[-1]
        Fh = F // 2
        z = _gelu(torch.einsum('bsd,df->bsf', x, w_in))
        z1 = z[..., :Fh].clone()
        z2 = _layernorm(z[..., Fh:], axis=-1)
        g = torch.einsum('ts,bsf->btf', w_sp, z2) + b_sp[None, :, None]
        return torch.einsum('bsf,fd->bsd', z1 * g, w_out)
    x = A_x
    mod = (_silu(c) @ w_mod).reshape(c.shape[0], 6, 1, -1)
    sa, ca, ga, sb, cb, gb = (mod[:, 0].clone(), mod[:, 1].clone(), mod[:, 2].clone(), mod[:, 3].clone(), mod[:, 4].clone(), mod[:, 5].clone())
    h = _layernorm(x, axis=-1) * (1 + ca) + sa
    x = x + ga * _A_ref(h, A_wqkv, A_wo)
    h = _layernorm(x, axis=-1) * (1 + cb) + sb
    x = x + gb * _B_ref(h, B_w_in, B_w_sp, B_b_sp, B_w_out)
    return x
```

```python
import re

TRANS = ('v_exp_f32', 'v_log_f32', 'v_rcp_f32', 'v_rsq_f32', 'v_sqrt_f32', 'v_sin_f32', 'v_cos_f32',
         'v_exp_f16', 'v_rcp_f16', 'v_rcp_iflag_f32')

def regs_of(tok):
    tok = tok.strip()
    tok = re.sub(r'^-', '', tok)
    m = re.match(r'^abs\((.*)\)$', tok)
    if m: tok = m.group(1)
    m = re.match(r'^\|(.*)\|$', tok)
    if m: tok = m.group(1)
    m = re.match(r'^([vsa])\[(\d+):(\d+)\]$', tok)
    if m:
        return {(m.group(1), i) for i in range(int(m.group(2)), int(m.group(3)) + 1)}
    m = re.match(r'^([vsa])(\d+)$', tok)
    if m:
        return {(m.group(1), int(m.group(2)))}
    if tok == 'vcc': return {('s', 'vcc')}
    if tok in ('vcc_lo', 'vcc_hi'): return {('s', 'vcc')}
    if tok == 'exec': return {('s', 'exec')}
    if tok == 'm0': return {('s', 'm0')}
    return set()

class Ins:
    __slots__ = ('text', 'op', 'rd', 'wr', 'kind', 'passes', 'srcc', 'srcab', 'label', 'target', 'nop', 'dpp')
    def __init__(self, text):
        self.text = text
        t = text.split(';')[0].strip()
        self.label = None; self.target = None; self.nop = 0; self.dpp = False
        self.rd = set(); self.wr = set(); self.kind = 'other'; self.passes = 0
        self.srcc = set(); self.srcab = set()
        if not t:
            self.kind = 'none'; self.op = ''; return
        if t.endswith(':'):
            self.kind = 'label'; self.label = t[:-1]; self.op = ''; return
        if t.startswith('.'):
            self.kind = 'none'; self.op = t; return
        parts = t.split(None, 1)
        op = parts[0]; self.op = op
        rest = parts[1] if len(parts) > 1 else ''
        ops = [o.strip() for o in re.split(r',(?![^\[]*\])', rest)] if rest else []
        mods = ''
        if ops:
            sp = ops[-1].split(None, 1)
            if len(sp) > 1:
                ops[-1] = sp[0]; mods = sp[1]
        R = [regs_of(o) for o in ops]
        allr = set().union(*R) if R else set()
        base = re.sub(r'_e(32|64)$', '', op)
        base = re.sub(r'_(dpp|sdwa)$', '', base)
        if 'row_' in mods or 'quad_perm' in mods or 'wave_' in mods or op.endswith('_dpp'):
            self.dpp = True
        if op == 's_nop':
            self.kind = 'nop'; self.nop = int(ops[0], 0) + 1
        elif op.startswith('v_mfma') or op.startswith('v_smfmac'):
            self.kind = 'mfma'
            self.passes = 8 if '32x32' in op else 4
            self.wr = R[0]; self.srcab = R[1] | R[2]; self.srcc = R[3] if len(R) > 3 else set()
            self.rd = self.srcab | self.srcc
        elif op.startswith('v_cmp'):
            self.kind = 'valu'; self.wr = R[0]; self.rd = set().union(*R[1:])
            if op.startswith('v_cmpx'): self.wr = self.wr | {('s', 'exec')}
        elif base in ('v_readfirstlane_b32', 'v_readlane_b32'):
            self.kind = 'readlane'; self.wr = R[0]; self.rd = set().union(*R[1:])
        elif base.startswith('v_permlane'):
            self.kind = 'permlane'; self.wr = R[0] | R[1]; self.rd = R[0] | R[1]
        elif op.startswith('v_'):
            self.kind = 'trans' if base in TRANS else 'valu'
            self.wr = set(R[0]); self.rd = set().union(*R[1:]) if len(R) > 1 else set()
            if base in ('v_add_co_u32', 'v_sub_co_u32', 'v_addc_co_u32', 'v_subb_co_u32', 'v_mad_u64_u32'):
                self.wr |= R[1]; self.rd = set().union(*R[2:])
            if base.startswith('v_fmac') or base.startswith('v_pk_fmac') or base.startswith('v_dot2c') or base == 'v_writelane_b32' or self.dpp:
                self.rd |= R[0]
            if base == 'v_cndmask_b32' and len(ops) == 3:
                self.rd |= {('s', 'vcc')}
        elif op.startswith('ds_read') or op.startswith('ds_bpermute') or op.startswith('ds_swizzle') or op.startswith('ds_permute'):
            self.kind = 'ds'; self.wr = R[0]; self.rd = set().union(*R[1:])
        elif op.startswith('ds_'):
            self.kind = 'ds'; self.rd = allr
        elif op.startswith('buffer_load') or op.startswith('global_load'):
            self.kind = 'vmem'
            if re.search(r'\blds\b', mods) or 'load_lds' in op:
                self.rd = allr | {('s', 'm0')}; self.kind = 'dma'
            else:
                self.wr = R[0]; self.rd = set().union(*R[1:])
        elif op.startswith('buffer_store') or op.startswith('global_store'):
            self.kind = 'store'; self.rd = allr
            if 'x3' in op or 'x4' in op:
                self.srcc = R[0] if op.startswith('buffer') else R[1]
        elif op.startswith('buffer_atomic') or op.startswith('global_atomic'):
            self.kind = 'vmem'; self.rd = allr
            if 'sc0' in mods: self.wr = R[0]
        elif op.startswith('buffer_') :
            self.kind = 'vmem'
        elif op.startswith('s_cbranch') or op == 's_branch':
            self.kind = 'branch'; self.target = ops[0]
            if 'vcc' in op: self.rd = {('s', 'vcc')}
            if 'exec' in op: self.rd = {('s', 'exec')}
        elif op == 's_endpgm':
            self.kind = 'end'
        elif op.startswith('s_cmp') or op in ('s_waitcnt', 's_barrier', 's_setprio', 's_sleep'):
            self.kind = 'salu'; self.rd = allr
        elif op.startswith('s_'):
            self.kind = 'salu'
            self.wr = set(R[0]) if R else set(); self.rd = set().union(*R[1:]) if len(R) > 1 else set()
            if 'saveexec' in op: self.wr |= {('s', 'exec')}; self.rd |= {('s', 'exec')}
        else:
            raise Exception('unknown instruction: ' + text)

VALU_KINDS = ('valu', 'trans', 'readlane', 'permlane')

def required(p, c):
    n = 0
    pv = {r for r in p.wr if r[0] in 'va'}
    ps = {r for r in p.wr if r[0] == 's'}
    if p.kind in VALU_KINDS:
        if pv:
            if c.kind == 'mfma' and (pv & c.rd): n = max(n, 2)
            if c.kind == 'permlane' and (pv & c.rd): n = max(n, 2)
            if c.dpp and (pv & c.rd): n = max(n, 2)
            if c.kind == 'readlane' and (pv & c.rd): n = max(n, 1)
            if p.kind == 'trans' and c.kind in VALU_KINDS and (pv & c.rd): n = max(n, 1)
        if ps:
            if c.kind in ('vmem', 'dma', 'store') and (ps & c.rd): n = max(n, 5)
            if c.kind in VALU_KINDS and (ps & c.rd):
                n = max(n, 4 if c.kind == 'readlane' else 2)
            if ('s', 'exec') in ps:
                if c.kind in ('readlane', 'permlane', 'mfma'): n = max(n, 4)
                if c.dpp: n = max(n, 5)
            if c.kind in ('salu', 'branch') and (ps & c.rd): n = max(n, 1)
    if p.kind == 'mfma':
        big = 12 if p.passes == 8 else 8
        if c.kind == 'mfma':
            if pv & c.srcab: n = max(n, big)
            if pv & c.srcc:
                if not (c.srcc == p.wr and c.passes == p.passes):
                    n = max(n, 10 if p.passes == 8 else 6)
            elif pv & c.wr:
                n = max(n, big)
        elif c.kind in VALU_KINDS or c.kind in ('vmem', 'dma', 'store', 'ds'):
            if pv & (c.rd | c.wr): n = max(n, big)
        if c.kind in VALU_KINDS and (p.srcc & c.wr):
            n = max(n, 7 if p.passes == 8 else 3)
    if p.kind == 'store' and p.srcc:
        if (p.srcc & c.wr): n = max(n, 2 if c.kind in VALU_KINDS else 1)
    if p.kind == 'salu' and ('s', 'm0') in p.wr and c.kind == 'dma':
        n = max(n, 1)
    return n

class Asm:
    def __init__(self):
        self.lines = []
    def __call__(self, text=''):
        for l in text.split('\n'):
            self.lines.append(l)
    def fix(self, verbose=False):
        ins = [Ins(l) for l in self.lines]
        out = []
        added = 0
        for c in ins:
            if c.kind in ('none', 'label'):
                out.append(c); continue
            need = 0; dist = 0
            for p in reversed(out):
                if p.kind in ('none', 'label'): continue
                if p.kind == 'end' or p.op == 's_branch': break
                r = required(p, c)
                if r > dist: need = max(need, r - dist)
                dist += p.nop if p.kind == 'nop' else 1
                if dist >= 20: break
            if need:
                added += need
                while need > 0:
                    k = min(need, 16)
                    out.append(Ins(f'    s_nop {k-1}')); need -= k
            out.append(c)
        labels = {x.label: i for i, x in enumerate(out) if x.kind == 'label'}
        def preds_window(i, depth):
            res = []; dist = 0
            j = i
            while j >= 0 and dist < depth:
                p = out[j]
                if p.kind not in ('none', 'label'):
                    if j != i and (p.kind == 'end' or p.op == 's_branch'): break
                    res.append((p, dist)); dist += p.nop if p.kind == 'nop' else 1
                j -= 1
            return res
        errs = []
        for i, b in enumerate(out):
            if b.kind == 'branch' and b.target in labels:
                pre = preds_window(i, 20)
                j = labels[b.target]; d2 = 0
                while j < len(out) and d2 < 20:
                    c = out[j]
                    if c.kind not in ('none', 'label'):
                        for p, d in pre:
                            if p is b: continue
                            gap = d + d2
                            r = required(p, c)
                            if r > gap:
                                errs.append(f'hazard across branch {b.text.strip()}: {p.text.strip()} -> {c.text.strip()} need {r} have {gap}')
                        if c.kind == 'end' or c.op == 's_branch': break
                        d2 += c.nop if c.kind == 'nop' else 1
                    j += 1
        if errs:
            raise Exception('\n'.join(errs[:20]))
        if verbose: print('nops added:', added)
        self.lines = [x.text for x in out]
        return self
    def text(self):
        return '\n'.join(self.lines) + '\n'

def interleave(main, fill, start=0, per=None):
    out = []
    n = len(main) - start
    if n <= 0:
        return list(main) + list(fill)
    j = 0
    for i, m in enumerate(main):
        out.append(m)
        if i >= start:
            k = i - start + 1
            tgt = (len(fill) * k + n - 1) // n if per is None else min(len(fill), per * k)
            while j < tgt:
                out.append(fill[j]); j += 1
    out.extend(fill[j:])
    return out
```

```python
from asmlib import Asm, interleave

KA = dict(x=0, wqkv=8, wo=16, bx=24, win=32, wsp=40, bsp=48, wout=56, c=64, wmod=72, out=80, dbg=88, ws=96)
SIZE = dict(x=4194304, wqkv=6291456, wo=2097152, win=7340032, wsp=8388608, bsp=4096, wout=3670016, c=2048,
            wmod=12582912, out=4194304, dbg=256)
WS = dict(
    MODP=(0x0, 2*6144*4),
    MODF=(0xC000, 6144*4),
    STAT1=(0x20000, 32*16*64*8),
    STAT2=(0x60000, 16*16*128*8),
    TIM=(0xA0000, 0x40000),
    H1=(0x100000, 4194304),
    QK=(0x500000, 8388608),
    VT=(0xD00000, 4194304),
    O=(0x1100000, 4194304),
    X1=(0x1500000, 4194304),
    H2=(0x1900000, 4194304),
    Z1=(0x1D00000, 7340032),
    Z2=(0x2400000, 7340032),
    Y=(0x2B00000, 7340032),
)
LOG2E = 1.4426950408889634

import struct
def f2i(x):
    return '0x%08x' % struct.unpack('<I', struct.pack('<f', x))[0]

def load_ptrs(a, names, sbase):
    d = {}
    for i, n in enumerate(names):
        r = sbase + 2*i
        a(f'    s_load_dwordx2 s[{r}:{r+1}], s[0:1], {KA[n]}')
        d[n] = r
    return d

def srd_in(a, sr, ptr, name):
    a(f'    s_mov_b32 s{sr}, s{ptr}')
    a(f'    s_mov_b32 s{sr+1}, s{ptr+1}')
    a(f'    s_mov_b32 s{sr+2}, {SIZE[name]}')
    a(f'    s_mov_b32 s{sr+3}, 0x20000')

def srd_ws(a, sr, wsptr, region, size=None):
    off, sz = WS[region]
    if size: sz = size
    if off:
        a(f'    s_add_u32 s{sr}, s{wsptr}, {off}')
        a(f'    s_addc_u32 s{sr+1}, s{wsptr+1}, 0')
    else:
        a(f'    s_mov_b32 s{sr}, s{wsptr}')
        a(f'    s_mov_b32 s{sr+1}, s{wsptr+1}')
    a(f'    s_mov_b32 s{sr+2}, {sz}')
    a(f'    s_mov_b32 s{sr+3}, 0x20000')

class Kernel:
    def __init__(self, name, grid, block, lds, vgpr):
        self.name, self.grid, self.block, self.lds, self.vgpr = name, grid, block, lds, vgpr
        self.a = Asm()
        a = self.a
        a(f'.p2align 8\n.globl {name}\n.type {name},@function\n{name}:')
        a(f'    s_cmp_ge_u32 s2, {grid}\n    s_cbranch_scc1 {name}_exit')
    def finish(self):
        a = self.a
        a(f'{self.name}_exit:\n    s_endpgm')
        a.fix()
        return a.text()
    def desc(self):
        v = (self.vgpr + 3)//4*4
        return f""".p2align 6
.amdhsa_kernel {self.name}
  .amdhsa_next_free_vgpr {v}
  .amdhsa_next_free_sgpr 102
  .amdhsa_accum_offset {v}
  .amdhsa_group_segment_fixed_size 0
  .amdhsa_kernarg_size 104
  .amdhsa_user_sgpr_count 2
  .amdhsa_user_sgpr_kernarg_segment_ptr 1
  .amdhsa_system_sgpr_workgroup_id_x 1
.end_amdhsa_kernel
"""

TIMING = False
def tstamp(a, sreg):
    if TIMING:
        a(f'    s_memtime s[{sreg}:{sreg+1}]')
def twrite(a, kidx, regs, wsptr, srd=96):
    if not TIMING: return
    a('    s_waitcnt lgkmcnt(0)')
    srd_ws(a, srd, wsptr, 'TIM')
    a(f'    s_lshl_b32 s95, s2, 5')
    a(f'    s_add_u32 s95, s95, {kidx*256*32}')
    a(f'    v_mov_b32 v1, 0')
    for i, r in enumerate(regs):
        a(f'    v_mov_b32 v2, s{r}')
        a(f'    buffer_store_dword v2, v1, s[{srd}:{srd+3}], s95 offen offset:{4*i}')
        a(f'    s_nop 0')
```

```python
from common import *
import common

class G:
    def __init__(self, name, TM, TN, K, BK, NS, shape, NT, NF, tok, feat, xmap, extra_lds=0, vgpr=256):
        self.name, self.TM, self.TN, self.K, self.BK, self.NS = name, TM, TN, K, BK, NS
        self.shape, self.NT, self.NF, self.tok, self.feat, self.xmap = shape, NT, NF, tok, feat, xmap
        self.tokB = TM*BK*2
        self.featB = TN*BK*2
        self.SZ = self.tokB + self.featB
        self.ring = self.SZ*NS
        self.nsteps = K//BK
        self.S = BK//(16 if shape == 32 else 32)
        self.k = Kernel(name + '_kernel', 256, 512, self.ring + extra_lds, vgpr)
        assert self.ring + extra_lds <= 163840
        self.a = self.k.a
        self.accw = 16 if shape == 32 else 4
        self.swap = set()

    def tile_ids(self):
        a = self.a
        xr_n, xc_n, tr, tc = self.xmap
        assert xr_n*xc_n == 8 and tr*tc == 32
        lg = lambda v: v.bit_length()-1
        a('    s_and_b32 s43, s2, 7\n    s_lshr_b32 s44, s2, 3')
        a(f'    s_lshr_b32 s40, s43, {lg(xc_n)}\n    s_and_b32 s41, s43, {xc_n-1}')
        a(f'    s_lshl_b32 s40, s40, {lg(tr)}\n    s_lshl_b32 s41, s41, {lg(tc)}')
        a(f'    s_lshr_b32 s45, s44, {lg(tc)}\n    s_and_b32 s44, s44, {tc-1}')
        a('    s_add_u32 s40, s40, s45\n    s_add_u32 s41, s41, s44')
        a('    v_lshrrev_b32 v2, 6, v0\n    v_and_b32 v1, 63, v0')
        a('    v_readfirstlane_b32 s42, v2')

    def pieces(self):
        P = []
        TM, BK = self.TM, self.BK
        if self.tok['kind'] == 'c8':
            for c in range(BK//8):
                for hh in range(TM//64):
                    P.append(('tc8', (c, hh), c*TM*16 + hh*1024))
        else:
            for p in range(TM//8):
                P.append(('trow', (p,), p*1024))
        fb = self.tokB
        if self.feat['kind'] == 'tr':
            for g in range(self.feat['ngroups']):
                for p in range(BK//8):
                    P.append(('ftr', (g, p), fb + g*BK*128 + p*1024))
            if self.feat.get('half'):
                for p in range(BK//16):
                    P.append(('fhalf', (p,), fb + self.feat['ngroups']*BK*128 + p*1024))
        else:
            for p in range(self.featB//1024):
                P.append(('flin', (p,), fb + p*1024))
        return P

    def loader(self, srdT, srdF, sT, sF, sH=None):
        a = self.a; n = self.name
        P = self.pieces()
        per = [P[i::4] for i in range(4)]
        dT = (self.BK//8)*32768 if self.tok['kind'] == 'c8' else 128
        dF = self.BK*self.feat['pitch'] if self.feat['kind'] == 'tr' else self.featB
        a(f'{n}_loader:')
        for lw in range(1, 4):
            a(f'    s_cmp_eq_u32 s42, {4+lw}\n    s_cbranch_scc1 {n}_ld{lw}')
        for lw in range(4):
            pcs = per[lw]; np_ = len(pcs)
            a(f'{n}_ld{lw}:')
            a('    v_lshrrev_b32 v3, 3, v1\n    v_and_b32 v4, 7, v1\n    v_lshlrev_b32 v5, 4, v1')
            for j, (kind, prm, lo) in enumerate(pcs):
                v = 16 + j
                if kind == 'tc8':
                    c, hh = prm
                    a(f'    v_add_u32 v{v}, {c*32768 + hh*1024}, v5')
                elif kind == 'flin':
                    a(f'    v_add_u32 v{v}, {prm[0]*1024}, v5')
                elif kind == 'trow':
                    p = prm[0]; pitch = self.tok['pitch']
                    a(f'    v_lshrrev_b32 v6, 4, v1\n    v_add_u32 v6, {4*p}, v6\n    v_and_b32 v6, 7, v6\n    v_xor_b32 v6, v6, v4')
                    a(f'    v_add_u32 v7, {8*p}, v3\n    v_mul_u32_u24 v7, {pitch}, v7\n    v_lshl_add_u32 v{v}, v6, 4, v7')
                elif kind == 'ftr':
                    g, p = prm; pitch = self.feat['pitch']
                    a('    v_bfe_u32 v6, v1, 4, 1')
                    if self.shape == 32:
                        a('    v_lshlrev_b32 v6, 2, v6')
                    else:
                        a(f'    v_lshlrev_b32 v6, 1, v6\n    v_or_b32 v6, {(p&1) << 2}, v6')
                    a('    v_xor_b32 v6, v6, v4')
                    a(f'    v_add_u32 v7, {8*p}, v3\n    v_mul_u32_u24 v7, {pitch}, v7\n    v_lshl_add_u32 v7, v6, 4, v7')
                    a(f'    v_add_u32 v{v}, {self.feat["gcol"][g]}, v7')
                elif kind == 'fhalf':
                    p = prm[0]; pitch = self.feat['pitch']
                    a('    v_lshrrev_b32 v6, 5, v1\n    v_lshlrev_b32 v6, 1, v6\n    v_and_b32 v8, 3, v1\n    v_xor_b32 v6, v6, v8')
                    a(f'    v_lshrrev_b32 v7, 2, v1\n    v_add_u32 v7, {16*p}, v7\n    v_mul_u32_u24 v7, {pitch}, v7\n    v_lshl_add_u32 v{v}, v6, 4, v7')
            def issue(slot_s=None, slot_imm=0):
                for j, (kind, prm, lo) in enumerate(pcs):
                    if slot_s is None: a(f'    s_mov_b32 m0, {slot_imm + lo}')
                    else: a(f'    s_add_u32 m0, s{slot_s}, {lo}')
                    srd, so = (srdT, sT) if kind[0] == 't' else (srdF, sH if kind == 'fhalf' else sF)
                    aux = self.tok.get('aux', '') if kind[0] == 't' else self.feat.get('aux', '')
                    a(f'    buffer_load_dwordx4 v{16+j}, s[{srd}:{srd+3}], s{so} offen {aux} lds'.replace('  lds', ' lds'))
                a(f'    s_add_u32 s{sT}, s{sT}, {dT}\n    s_add_u32 s{sF}, s{sF}, {dF}')
                if sH is not None: a(f'    s_add_u32 s{sH}, s{sH}, {dF}')
            NS, ns = self.NS, self.nsteps
            for s in range(NS): issue(None, s*self.SZ)
            a(f'    s_waitcnt vmcnt({(NS-1)*np_})\n    s_barrier')
            nloop = ns - NS
            a(f'    s_mov_b32 s46, 0\n    s_mov_b32 s47, {nloop}')
            a(f'{n}_ld{lw}_loop:')
            a(f'    s_waitcnt vmcnt({(NS-2)*np_})\n    s_barrier')
            issue(46)
            a(f'    s_add_u32 s46, s46, {self.SZ}\n    s_cmp_eq_u32 s46, {self.ring}\n    s_cselect_b32 s46, 0, s46')
            a(f'    s_sub_u32 s47, s47, 1\n    s_cmp_lg_u32 s47, 0\n    s_cbranch_scc1 {n}_ld{lw}_loop')
            for i in range(ns-NS+1, ns):
                a(f'    s_waitcnt vmcnt({(ns-1-i)*np_})\n    s_barrier')
            a('    s_endpgm')

    def acc(self, tb, fb):
        b = self.ACC + (tb*self.NF + fb)*self.accw
        return b
    def setup_regs(self, ACC, FR, AD):
        self.ACC, self.FR, self.AD = ACC, FR, AD
        self.nfr = (self.NT + self.NF)*4
    def ftok(self, st, tb): return self.FR + st*self.nfr + tb*4
    def ffeat(self, st, fb): return self.FR + st*self.nfr + self.NT*4 + fb*4

    def addr_setup(self, s_tw, s_fw):
        a = self.a; AD = self.AD; TM = self.TM
        bases = []
        sh = 5 if self.shape == 32 else 4
        msk = 31 if self.shape == 32 else 15
        a(f'    v_and_b32 v3, {msk}, v1\n    v_lshrrev_b32 v4, {sh}, v1\n    v_add_u32 v5, s{s_tw}, v3')
        if self.tok['kind'] == 'c8':
            a(f'    v_mul_u32_u24 v6, {TM*16}, v4\n    v_lshl_add_u32 v{AD}, v5, 4, v6')
            self.vT = [AD]; AD += 1
        else:
            a('    v_lshrrev_b32 v6, 1, v3')
            self.vT = []
            for sub in range(2):
                a(f'    v_add_u32 v7, {4*sub}, v4\n    v_xor_b32 v7, v7, v6\n    v_lshlrev_b32 v7, 4, v7\n    v_lshl_add_u32 v{AD}, v5, 7, v7')
                self.vT.append(AD); AD += 1
        a('    v_lshrrev_b32 v4, 4, v1\n    v_bfe_u32 v6, v1, 2, 2\n    v_and_b32 v7, 3, v1')
        fb0 = self.tokB
        self.vF = []
        mode = self.feat['mode']
        if mode == 'qkv' or mode == 'grp':
            a('    v_lshrrev_b32 v8, 1, v4\n    v_lshl_add_u32 v8, v8, 3, v6\n    v_lshlrev_b32 v8, 7, v8')
            a('    v_and_b32 v9, 1, v4\n    v_lshl_add_u32 v8, v9, 5, v8\n    v_lshl_add_u32 v8, v7, 3, v8')
            a('    v_lshrrev_b32 v9, 1, v6')
            if mode == 'qkv':
                a(f'    v_xor_b32 v9, s{s_fw}, v9\n    v_lshl_add_u32 v{AD}, v9, 6, v8\n    v_add_u32 v{AD}, {fb0}, v{AD}')
                self.vF = [AD]; AD += 1
            else:
                a(f'    s_mul_i32 s48, s{s_fw}, {self.BK*128}\n    s_add_u32 s48, s48, {fb0}')
                for h in range(2):
                    a(f'    v_xor_b32 v10, {h}, v9\n    v_lshl_add_u32 v{AD}, v10, 6, v8\n    v_add_u32 v{AD}, s48, v{AD}')
                    self.vF.append(AD); AD += 1
        elif mode == 'win':
            a('    v_lshl_add_u32 v8, v4, 3, v6      ; 8q+r')
            a('    v_and_b32 v9, 1, v4\n    v_lshrrev_b32 v10, 1, v6\n    v_lshl_add_u32 v10, v9, 1, v10   ; swz')
            a('    v_lshlrev_b32 v11, 7, v8\n    v_lshl_add_u32 v11, v7, 3, v11')
            for i in range(6):
                a(f'    s_mul_i32 s48, s{s_fw}, 6\n    s_add_u32 s48, s48, {i}\n    s_and_b32 s49, s48, 3\n    s_lshr_b32 s48, s48, 2')
                a(f'    s_mul_i32 s48, s48, {self.BK*128}\n    s_add_u32 s48, s48, {fb0}')
                a(f'    v_xor_b32 v12, s49, v10\n    v_lshl_add_u32 v12, v12, 5, v11\n    v_add_u32 v{AD}, s48, v12')
                self.vF.append(AD); AD += 1
            a(f'    v_lshlrev_b32 v11, 6, v8\n    v_lshl_add_u32 v11, v7, 3, v11\n    v_xor_b32 v12, s{s_fw}, v9\n    v_lshl_add_u32 v12, v12, 5, v11')
            a(f'    v_add_u32 v{AD}, {fb0 + 3*self.BK*128}, v12')
            self.vF.append(AD); AD += 1
        elif mode == 'wsp':
            a('    v_lshrrev_b32 v8, 1, v4\n    v_lshl_add_u32 v8, v8, 4, v6\n    v_and_b32 v9, 1, v4\n    v_lshl_add_u32 v8, v9, 2, v8')
            a(f'    v_lshlrev_b32 v8, 5, v8\n    v_lshl_add_u32 v8, v7, 3, v8\n    v_add_u32 v{AD}, {fb0}, v8')
            self.vF = [AD]; AD += 1
        self.ADend = AD

    def reads(self, st, sub):
        R = []
        TM, BK = self.TM, self.BK
        tk, ft = [], []
        for tb in range(self.NT):
            d = self.ftok(st, tb)
            if self.tok['kind'] == 'c8':
                off = sub*(2 if self.shape == 32 else 4)*TM*16 + tb*(512 if self.shape == 32 else 256)
                tk.append([f'    ds_read_b128 v[{d}:{d+3}], v{self.vT[0]} offset:{off}'])
            else:
                tk.append([f'    ds_read_b128 v[{d}:{d+3}], v{self.vT[sub]} offset:{tb*2048}'])
        mode = self.feat['mode']
        for fb in range(self.NF):
            d = self.ffeat(st, fb); l = []
            for rr in range(2):
                if mode == 'qkv': v, off = self.vF[0], fb*BK*128 + (16*sub + 4*rr)*128
                elif mode == 'grp': v, off = self.vF[fb], (16*sub + 4*rr)*128
                elif mode == 'win': v, off = self.vF[fb], (32*sub + 4*rr)*(128 if fb < 6 else 64)
                elif mode == 'wsp': v, off = self.vF[0], fb*2048 + (32*sub + 8*rr)*32
                l.append(f'    ds_read_b64_tr_b16 v[{d+2*rr}:{d+2*rr+1}], v{v} offset:{off}')
            ft.append(l)
        R += tk[0] + ft[0]
        for t in tk[1:]: R += t
        for f in ft[1:]: R += f
        return R

    def mfmas(self, st):
        op = 'v_mfma_f32_32x32x16_bf16' if self.shape == 32 else 'v_mfma_f32_16x16x32_bf16'
        M = []
        for fb in range(self.NF):
            for tb in range(self.NT):
                c = self.acc(tb, fb); w = self.accw
                A, B = self.ffeat(st, fb), self.ftok(st, tb)
                if fb in self.swap: A, B = B, A
                M.append(f'    {op} v[{c}:{c+w-1}], v[{A}:{A+3}], v[{B}:{B+3}], v[{c}:{c+w-1}]')
        return M

    def mainloop(self, rper=None):
        a = self.a; n = self.name; S = self.S
        assert S % 2 == 0
        nacc = self.NT*self.NF*self.accw
        for i in range(nacc): a(f'    v_mov_b32 v{self.ACC+i}, 0')
        allv = self.vT + self.vF
        a(f'    s_mov_b32 s46, 0\n    s_mov_b32 s47, {self.nsteps-1}')
        a('    s_barrier')
        tstamp(a, 82)
        for r in self.reads(0, 0): a(r)
        if rper is None: rper = 2 if self.shape == 32 else 1
        def step(last):
            for sub in range(S):
                st = sub & 1
                M = self.mfmas(st)
                a('    s_waitcnt lgkmcnt(0)')
                if sub < S-1:
                    F = self.reads(st ^ 1, sub+1)
                elif not last:
                    a('    s_barrier')
                    F = [f'    v_add_u32 v{v}, s48, v{v}' for v in allv] + self.reads(st ^ 1, 0)
                else:
                    F = []
                if sub == 0 and not last:
                    F = F + [f'    s_add_u32 s46, s46, {self.SZ}', f'    s_cmp_eq_u32 s46, {self.ring}',
                             f'    s_cselect_b32 s48, {-(self.ring - self.SZ) & 0xffffffff}, s49',
                             '    s_cselect_b32 s46, 0, s46']
                pr = rper + (1 if (sub == S-1 and self.shape == 16) else 0) + (1 if (sub == S-1 and self.shape == 32) else 0)
                for l in interleave(M, F, per=pr): a(l)
        a(f'    s_mov_b32 s49, {self.SZ}')
        a(f'{n}_loop:')
        step(False)
        a(f'    s_sub_u32 s47, s47, 1\n    s_cmp_lg_u32 s47, 0\n    s_cbranch_scc1 {n}_loop')
        step(True)
        tstamp(a, 84)
```

```python
from common import *
import common
from k_gemms import pack_swap32

BIAS = 80.0
def k_attn(prefetch=True):
    k = Kernel('attn_kernel', 256, 512, 131072 + 1024, 128)
    a = k.a
    tstamp(a, 80)
    p = load_ptrs(a, ['ws', 'wo', 'win', 'wsp', 'wout'], 4)
    Q, NEG, S0, S1, P, O, L, ONES, K0, K1, V0, V1 = 8, 16, 32, 48, 64, 72, 88, 92, 96, 100, 104, 108
    vK, vV, vD, vPF = 112, 113, 114, 118
    SB = [S0, S1]
    m32 = lambda d, A, B, c: f'    v_mfma_f32_32x32x16_bf16 v[{d}:{d+15}], v[{A}:{A+3}], v[{B}:{B+3}], ' + (f'v[{c}:{c+15}]' if c is not None else '0')
    m16 = lambda B: f'    v_mfma_f32_16x16x32_bf16 v[{L}:{L+3}], v[{ONES}:{ONES+3}], v[{B}:{B+3}], v[{L}:{L+3}]'
    a('    v_lshrrev_b32 v2, 6, v0\n    v_and_b32 v1, 63, v0')
    a('    s_and_b32 s43, s2, 7\n    s_lshr_b32 s44, s2, 3')
    a('    v_readfirstlane_b32 s42, v2')
    a('    s_and_b32 s40, s43, 3\n    s_lshl_b32 s40, s40, 3\n    s_lshr_b32 s45, s43, 2\n    s_lshl_b32 s45, s45, 2\n    s_add_u32 s40, s40, s45')
    a('    s_lshr_b32 s45, s44, 3\n    s_add_u32 s40, s40, s45\n    s_and_b32 s41, s44, 7')
    a('    v_and_b32 v3, 31, v1\n    v_lshrrev_b32 v4, 5, v1\n    v_lshlrev_b32 v5, 4, v1')
    a('    v_lshlrev_b32 v6, 15, v4\n    v_lshl_add_u32 v6, v3, 4, v6')
    a('    s_lshl_b32 s50, s40, 17')
    a('    s_lshl_b32 s51, s41, 8\n    s_lshl_b32 s45, s42, 5\n    s_add_u32 s51, s51, s45\n    s_lshl_b32 s51, s51, 4\n    s_add_u32 s51, s51, s50   ; Q/O offset')
    a(f'    s_add_u32 s52, s50, {128*32768}   ; K base')
    a('    s_mov_b32 s53, s50               ; V base')
    a('    s_lshr_b32 s45, s42, 1\n    s_lshl_b32 s46, s45, 15\n    s_and_b32 s47, s42, 1\n    s_lshl_b32 s47, s47, 11\n    s_add_u32 s46, s46, s47')
    a(f'    v_add_u32 v{vD}, s46, v5\n    v_add_u32 v{vD+1}, 1024, v{vD}')
    a(f'    s_lshl_b32 s46, s42, 11\n    v_add_u32 v{vD+2}, s46, v5\n    v_add_u32 v{vD+3}, 1024, v{vD+2}')
    a('    s_lshl_b32 s54, s45, 12\n    s_add_u32 s54, s54, s47')
    a('    s_add_u32 s55, s46, 16384')
    a('    s_waitcnt lgkmcnt(0)')
    srd_ws(a, 16, p['ws'], 'QK'); srd_ws(a, 20, p['ws'], 'VT')
    a('    s_add_u32 s45, s51, 65536')
    a(f'    buffer_load_dwordx4 v[{Q}:{Q+3}], v6, s[16:19], s51 offen')
    a(f'    buffer_load_dwordx4 v[{Q+4}:{Q+7}], v6, s[16:19], s45 offen')
    def chunk_dma(slot_s):
        for j in range(4):
            base = 54 if j < 2 else 55
            if slot_s is None:
                a(f'    s_add_u32 m0, s{base}, {1024*(j&1)}')
            else:
                a(f'    s_add_u32 s45, s{base}, s{slot_s}\n    s_add_u32 m0, s45, {1024*(j&1)}')
            if j < 2: a(f'    buffer_load_dwordx4 v{vD+j}, s[16:19], s56 offen lds')
            else: a(f'    buffer_load_dwordx4 v{vD+j}, s[20:23], s57 offen lds')
        a('    s_add_u32 s56, s56, 4096\n    s_add_u32 s57, s57, 16384')
    a('    s_mov_b32 s56, s52\n    s_mov_b32 s57, s53\n    s_mov_b32 s58, 0')
    for c in range(4):
        chunk_dma(58)
        a('    s_add_u32 s58, s58, 32768')
    a('    s_mov_b32 s58, 0')
    srd_ws(a, 24, p['ws'], 'O')
    srd_in(a, 28, p['wo'], 'wo'); srd_in(a, 32, p['win'], 'win'); srd_in(a, 36, p['wsp'], 'wsp'); srd_in(a, 64, p['wout'], 'wout')
    a(f'    s_lshl_b32 s45, s2, 3\n    s_add_u32 s45, s45, s42\n    s_lshl_b32 s45, s45, 10\n    v_add_u32 v{vPF}, s45, v5')
    a(f'    v_lshlrev_b32 v{vK}, 12, v4\n    v_lshl_add_u32 v{vK}, v3, 4, v{vK}\n    v_add_u32 v{vV}, 16384, v5')
    a('    v_lshrrev_b32 v7, 2, v1\n    v_xor_b32 v7, v7, v1\n    v_and_b32 v7, 4, v7')
    a(f'    v_cmp_eq_u32 vcc, 0, v7\n    v_mov_b32 v7, 0x3f803f80\n    v_cndmask_b32 v{ONES}, 0, v7, vcc')
    for i in range(1, 4): a(f'    v_mov_b32 v{ONES+i}, v{ONES}')
    for i in range(16): a(f'    v_mov_b32 v{O+i}, 0')
    for i in range(4): a(f'    v_mov_b32 v{L+i}, 0\n    v_mov_b32 v{P+4+i}, 0\n    v_mov_b32 v{V1+i}, 0')
    a('    s_waitcnt vmcnt(12)\n    s_barrier')
    tstamp(a, 82)
    a(f'    ds_read_b128 v[{K0}:{K0+3}], v{vK}\n    ds_read_b128 v[{K1}:{K1+3}], v{vK} offset:8192')
    a(f'    ds_read_b128 v[{V0}:{V0+3}], v{vV}')
    a('    s_waitcnt lgkmcnt(1)')
    a(m32(S0, K0, Q, None)); a(m32(S0, K1, Q+4, S0))
    a('    s_nop 4')
    a(f'    ds_read_b128 v[{K0}:{K0+3}], v{vK} offset:512\n    ds_read_b128 v[{K1}:{K1+3}], v{vK} offset:{8192+512}')
    def maxtree(S, d):
        a(f'    v_max3_f32 v{d}, v{S}, v{S+1}, v{S+2}\n    v_max3_f32 v{d+1}, v{S+3}, v{S+4}, v{S+5}')
        for i in range(6, 14, 4): a(f'    v_max3_f32 v{d}, v{d}, v{S+i}, v{S+i+1}\n    v_max3_f32 v{d+1}, v{d+1}, v{S+i+2}, v{S+i+3}')
        a(f'    v_max3_f32 v{d}, v{d}, v{S+14}, v{S+15}\n    v_max_f32 v{d}, v{d}, v{d+1}')
    maxtree(S0, 120)
    a('    v_mov_b32 v121, v120\n    v_permlane32_swap_b32 v120, v121\n    v_max_f32 v120, v120, v121')
    a(f'    v_sub_f32 v{NEG}, {f2i(-BIAS)}, v120')
    for i in range(1, 16): a(f'    v_mov_b32 v{NEG+i}, v{NEG}')
    for i in range(16): a(f'    v_add_f32 v{S0+i}, v{S0+i}, v{NEG}')
    a('    s_mov_b32 s59, 0     ; chunk\n    s_mov_b32 s60, 0    ; K slot\n    s_mov_b32 s61, 32768')
    a('    s_waitcnt lgkmcnt(0)')
    a('attn_loop:')
    for t in range(8):
        S = SB[t & 1]; Sn = SB[(t+1) & 1]
        e = lambda i: f'    v_exp_f32 v{S+i}, v{S+i}'
        c = lambda j: f'    v_cvt_pk_bf16_f32 v{P+j}, v{S+2*j}, v{S+2*j+1}'
        kt = (t+2) % 8
        if t == 6:
            a('    s_cmp_eq_u32 s59, 6\n    s_cbranch_scc1 attn_w6')
            a('    s_waitcnt vmcnt(6)')
            a('attn_w6r:')
            a('    s_barrier')
            a('    s_add_u32 s60, s60, 32768\n    s_cmp_eq_u32 s60, 131072\n    s_cselect_b32 s62, -98304, s61\n    s_cselect_b32 s60, 0, s60')
            for ev in range(5):
                a(f'    s_cmp_eq_u32 s59, {ev}\n    s_cbranch_scc1 attn_ev{ev}')
            a('attn_evr:')
            a(f'    v_add_u32 v{vK}, s62, v{vK}')
        a('    s_waitcnt lgkmcnt(1)')
        a(m32(Sn, K0, Q, NEG))
        if t > 0: a(f'    ds_read_b128 v[{V0}:{V0+3}], v{vV} offset:{2048*t}')
        else:
            a('    s_cmp_eq_u32 s59, 0\n    s_cbranch_scc1 attn_skipv')
            a(f'    v_add_u32 v{vV}, s62, v{vV}')
            a('attn_skipv:')
            a(f'    ds_read_b128 v[{V0}:{V0+3}], v{vV}')
        a(e(0)); a(e(1)); a(e(2))
        a(m32(O, V1, P+4, O))
        a(f'    ds_read_b128 v[{K0}:{K0+3}], v{vK} offset:{512*kt}')
        a(e(3)); a(e(4)); a(e(5))
        a(m16(P+4))
        a(f'    ds_read_b128 v[{V1}:{V1+3}], v{vV} offset:{2048*t + 1024}')
        a(e(6)); a(e(7)); a(c(0)); a(c(1))
        a('    s_waitcnt lgkmcnt(2)')
        a(m32(Sn, K1, Q+4, Sn))
        a(e(8)); a(c(2)); a(c(3)); a(e(9)); a(e(10))
        a(m32(O, V0, P, O))
        a(f'    ds_read_b128 v[{K1}:{K1+3}], v{vK} offset:{8192 + 512*kt}')
        a(e(11)); a(e(12)); a(e(13))
        a(m16(P))
        a(e(14)); a(e(15)); a(c(4)); a(c(5)); a(c(6)); a(c(7))
    a('    s_add_u32 s59, s59, 1\n    s_cmp_lt_u32 s59, 8\n    s_cbranch_scc1 attn_loop')
    a('    s_waitcnt lgkmcnt(0)')
    a(m32(O, V1, P+4, O)); a(m16(P+4))
    tstamp(a, 84)
    a('    s_nop 7')
    a(f'    v_add_f32 v120, abs(v{O}), abs(v{O+1})')
    for i in range(2, 16): a(f'    v_add_f32 v120, v120, abs(v{O+i})')
    a(f'    v_mov_b32 v121, {f2i(2.0**110)}\n    v_cmp_nlt_f32 vcc, v{L}, v121')
    a(f'    v_mov_b32 v121, 0x7f800000\n    v_cmp_nlt_f32 s[46:47], v120, v121')
    a('    s_or_b64 vcc, vcc, s[46:47]\n    s_cbranch_vccnz attn_slow')
    a('attn_fin:')
    a(f'    v_rcp_f32 v120, v{L}')
    for i in range(16): a(f'    v_mul_f32 v{O+i}, v{O+i}, v120')
    pack_swap32(a, O, P)
    a('    s_add_u32 s45, s51, 65536')
    a(f'    buffer_store_dwordx4 v[{P}:{P+3}], v6, s[24:27], s51 offen')
    a(f'    buffer_store_dwordx4 v[{P+4}:{P+7}], v6, s[24:27], s45 offen')
    if common.TIMING:
        a('    s_waitcnt vmcnt(0)'); tstamp(a, 86); twrite(a, 3, [80, 82, 84, 86], p['ws'])
    a('    s_endpgm')
    a('attn_w6:\n    s_waitcnt vmcnt(2)\n    s_branch attn_w6r')
    M = 2048*1024
    evs = [[(28, 0), (32, 0), (32, 1), (32, 2), (32, 3), (36, 0)], [(36, 1), (36, 2)], [(36, 3), (64, 0)], [(64, 1), (28, 1)], [(28, 1), (28, 1)]]
    for ev in range(5):
        a(f'attn_ev{ev}:')
        if ev > 0:
            chunk_dma(58)
            a('    s_add_u32 s58, s58, 32768')
        a('    s_mov_b32 m0, 131072')
        for srd, i in evs[ev]:
            if not prefetch: srd, i = 28, 1
            a(f'    s_mov_b32 s45, {i*M}')
            a(f'    buffer_load_dwordx4 v{vPF}, s[{srd}:{srd+3}], s45 offen lds')
        a('    s_branch attn_evr')
    a('attn_slow:')
    a('    s_waitcnt vmcnt(0)')
    a('    v_mov_b32 v122, 0xff800000\n    s_mov_b32 s56, s52\n    s_mov_b32 s59, 64')
    a('attn_slow1:')
    a('    s_add_u32 s45, s56, 65536')
    a(f'    buffer_load_dwordx4 v[{K0}:{K0+3}], v6, s[16:19], s56 offen\n    buffer_load_dwordx4 v[{K1}:{K1+3}], v6, s[16:19], s45 offen')
    a('    s_waitcnt vmcnt(0)')
    a(m32(S0, K0, Q, None)); a(m32(S0, K1, Q+4, S0))
    maxtree(S0, 120)
    a('    v_max_f32 v122, v122, v120')
    a('    s_add_u32 s56, s56, 512\n    s_sub_u32 s59, s59, 1\n    s_cmp_lg_u32 s59, 0\n    s_cbranch_scc1 attn_slow1')
    a('    v_mov_b32 v121, v122\n    v_permlane32_swap_b32 v122, v121\n    v_max_f32 v122, v122, v121')
    a(f'    v_sub_f32 v{NEG}, 0, v122')
    for i in range(1, 16): a(f'    v_mov_b32 v{NEG+i}, v{NEG}')
    for i in range(16): a(f'    v_mov_b32 v{O+i}, 0')
    for i in range(4): a(f'    v_mov_b32 v{L+i}, 0')
    a('    s_mov_b32 s56, s52\n    s_mov_b32 s57, s53\n    s_mov_b32 s59, 64')
    a('attn_slow2:')
    a('    s_add_u32 s45, s56, 65536')
    a(f'    buffer_load_dwordx4 v[{K0}:{K0+3}], v6, s[16:19], s56 offen\n    buffer_load_dwordx4 v[{K1}:{K1+3}], v6, s[16:19], s45 offen')
    a(f'    buffer_load_dwordx4 v[{V0}:{V0+3}], v5, s[20:23], s57 offen\n    buffer_load_dwordx4 v[{V1}:{V1+3}], v5, s[20:23], s57 offen offset:1024')
    a('    s_waitcnt vmcnt(0)')
    a(m32(S0, K0, Q, NEG)); a(m32(S0, K1, Q+4, S0))
    for i in range(16): a(f'    v_exp_f32 v{S0+i}, v{S0+i}')
    for j in range(8): a(f'    v_cvt_pk_bf16_f32 v{P+j}, v{S0+2*j}, v{S0+2*j+1}')
    a(m32(O, V0, P, O)); a(m16(P)); a(m32(O, V1, P+4, O)); a(m16(P+4))
    a('    s_add_u32 s56, s56, 512\n    s_add_u32 s57, s57, 2048\n    s_sub_u32 s59, s59, 1\n    s_cmp_lg_u32 s59, 0\n    s_nop 7\n    s_cbranch_scc1 attn_slow2')
    a('    s_nop 7\n    s_branch attn_fin')
    return k
```

```python
from common import *
import common
from gemm import G

SPIN_MAX = 1 << 20

def dispatch(g):
    a = g.a
    a(f'    s_cmp_ge_u32 s42, 4\n    s_cbranch_scc1 {g.name}_loader')

def pack_swap32(a, src, dst):
    for j in range(8):
        a(f'    v_cvt_pk_bf16_f32 v{dst+j}, v{src+2*j}, v{src+2*j+1}')
    for jj in range(2):
        a(f'    v_permlane32_swap_b32 v{dst+4*jj}, v{dst+4*jj+2}')
        a(f'    v_permlane32_swap_b32 v{dst+4*jj+1}, v{dst+4*jj+3}')

def k_qkv(BK=64, NS=4):
    g = G('qkv', 128, 192, 1024, BK, NS, 32, 2, 3, dict(kind='c8'),
          dict(kind='tr', mode='qkv', ngroups=3, pitch=6144, gcol=[0, 2048, 4096]), (2, 4, 8, 4), vgpr=176)
    g.swap = {2}
    a = g.a
    tstamp(a, 80)
    p = load_ptrs(a, ['ws', 'wqkv'], 4)
    g.tile_ids()
    a('    s_lshl_b32 s50, s40, 11\n    s_lshl_b32 s51, s41, 7')
    a('    s_waitcnt lgkmcnt(0)')
    srd_ws(a, 12, p['ws'], 'H1'); srd_in(a, 16, p['wqkv'], 'wqkv')
    dispatch(g)
    srd_ws(a, 20, p['ws'], 'QK'); srd_ws(a, 24, p['ws'], 'VT')
    a('    s_and_b32 s54, s42, 1\n    s_lshr_b32 s53, s42, 1\n    s_lshl_b32 s53, s53, 6')
    g.setup_regs(ACC=16, FR=112, AD=152)
    g.addr_setup(53, 54)
    g.mainloop()
    a('    s_lshl_b32 s55, s41, 1\n    s_add_u32 s55, s55, s54      ; head')
    a('    s_lshl_b32 s56, s40, 7\n    s_add_u32 s56, s56, s53      ; tok0')
    a('    s_lshl_b32 s57, s55, 17\n    s_lshl_b32 s58, s56, 4\n    s_add_u32 s57, s57, s58')
    a('    s_lshl_b32 s59, s55, 17\n    s_lshl_b32 s58, s56, 6\n    s_add_u32 s59, s59, s58')
    a('    v_and_b32 v3, 31, v1\n    v_lshrrev_b32 v4, 5, v1\n    v_lshlrev_b32 v4, 15, v4\n    v_lshl_add_u32 v3, v3, 4, v4')
    a('    v_lshlrev_b32 v4, 4, v1')
    a(f'    s_mov_b32 s60, {f2i(32**-0.5*LOG2E)}')
    T = 112
    for tb in range(2):
        for b in (2, 1, 0):
            src = g.acc(tb, b); dst = T; T = 112 + (T - 112 + 8) % 32
            if b == 0:
                for j in range(16): a(f'    v_mul_f32 v{src+j}, s60, v{src+j}')
            if b == 2:
                for j in range(8):
                    a(f'    v_cvt_pk_bf16_f32 v{dst+j}, v{src+2*j}, v{src+2*j+1}')
                for jj in range(2):
                    a(f'    buffer_store_dwordx4 v[{dst+4*jj}:{dst+4*jj+3}], v4, s[24:27], s59 offen offset:{tb*2048 + jj*1024}')
            else:
                pack_swap32(a, src, dst)
                for jj in range(2):
                    a(f'    s_add_u32 s61, s57, {b*128*32768 + jj*2*32768}')
                    a(f'    buffer_store_dwordx4 v[{dst+4*jj}:{dst+4*jj+3}], v3, s[20:23], s61 offen offset:{tb*512}')
    if common.TIMING:
        a('    s_waitcnt vmcnt(0)'); tstamp(a, 86); twrite(a, 2, [80, 82, 84, 86], p['ws'])
    a('    s_endpgm')
    g.loader(12, 16, 50, 51)
    return g.k

def stage_vecs(g, srd, vecs, ldsoff):
    a = g.a
    n = len(vecs)
    a(f'    v_cmp_gt_u32 vcc, {32*n}, v0\n    s_and_saveexec_b64 s[62:63], vcc\n    s_cbranch_execz {g.name}_nostage')
    a('    v_lshrrev_b32 v6, 5, v0\n    v_and_b32 v7, 31, v0')
    a(f'    v_mov_b32 v8, {vecs[0]*4096}')
    for i in range(1, n):
        a(f'    v_mov_b32 v9, {vecs[i]*4096}\n    v_cmp_le_u32 vcc, {i}, v6\n    v_cndmask_b32 v8, v8, v9, vcc')
    a('    v_lshl_add_u32 v8, v7, 4, v8\n    s_lshl_b32 s61, s41, 9')
    a(f'    buffer_load_dwordx4 v[12:15], v8, s[{srd}:{srd+3}], s61 offen')
    a(f'    v_lshlrev_b32 v9, 4, v0\n    v_add_u32 v9, {ldsoff}, v9')
    a('    s_waitcnt vmcnt(0)\n    ds_write_b128 v9, v[12:15]\n    s_waitcnt lgkmcnt(0)')
    a(f'{g.name}_nostage:\n    s_mov_b64 exec, s[62:63]')

def k_wo(NS=6, xmap=(4, 2, 8, 4)):
    g = G('wo', 64, 128, 1024, 64, NS, 32, 1, 2, dict(kind='c8'),
          dict(kind='tr', mode='grp', ngroups=2, pitch=2048, gcol=[0, 128]), xmap, extra_lds=2048, vgpr=128)
    a = g.a; n = g.name
    tstamp(a, 80)
    p = load_ptrs(a, ['ws', 'wo', 'x'], 4)
    g.tile_ids()
    a('    s_lshl_b32 s50, s40, 10\n    s_lshl_b32 s51, s41, 8')
    a('    s_waitcnt lgkmcnt(0)')
    srd_ws(a, 12, p['ws'], 'O'); srd_in(a, 16, p['wo'], 'wo')
    dispatch(g)
    srd_in(a, 20, p['x'], 'x'); srd_ws(a, 24, p['ws'], 'MODF'); srd_ws(a, 28, p['ws'], 'X1'); srd_ws(a, 32, p['ws'], 'H2'); srd_ws(a, 36, p['ws'], 'STAT1')
    a('    s_and_b32 s54, s42, 1\n    s_lshr_b32 s53, s42, 1\n    s_lshl_b32 s53, s53, 5')
    VL = g.ring
    stage_vecs(g, 24, [2, 4, 3], VL)
    a('    s_lshl_b32 s56, s40, 6\n    s_add_u32 s56, s56, s53     ; tok0')
    a('    s_lshl_b32 s57, s56, 11\n    s_lshl_b32 s58, s41, 8\n    s_add_u32 s57, s57, s58\n    s_lshl_b32 s58, s54, 7\n    s_add_u32 s57, s57, s58')
    a('    v_and_b32 v3, 31, v1\n    v_lshrrev_b32 v4, 5, v1\n    v_lshlrev_b32 v5, 11, v3\n    v_lshl_add_u32 v5, v4, 3, v5')
    XR = 96
    for b in range(2):
        for j in range(4):
            r = XR + (b*4+j)*2
            a(f'    buffer_load_dwordx2 v[{r}:{r+1}], v5, s[20:23], s57 offen offset:{b*64 + j*16}')
    g.setup_regs(ACC=16, FR=48, AD=72)
    g.addr_setup(53, 54)
    g.mainloop()
    a('    v_and_b32 v3, 31, v1\n    v_lshrrev_b32 v4, 5, v1')
    a(f'    s_lshl_b32 s58, s54, 8\n    s_add_u32 s58, s58, {VL}\n    v_lshl_add_u32 v6, v4, 4, s58')
    for b in range(2):
        for j in range(4):
            r = 48 + (b*4+j)*4
            a(f'    ds_read_b128 v[{r}:{r+3}], v6 offset:{b*128 + j*32}')
    a('    s_waitcnt vmcnt(0)')
    for b in range(2):
        for j in range(4):
            idx = b*4+j
            a(f'    s_waitcnt lgkmcnt({7-idx})')
            xr = XR + idx*2; gr = 48 + idx*4; c = g.acc(0, b) + 4*j
            a(f'    v_lshlrev_b32 v8, 16, v{xr}\n    v_and_b32 v9, 0xffff0000, v{xr}\n    v_lshlrev_b32 v10, 16, v{xr+1}\n    v_and_b32 v11, 0xffff0000, v{xr+1}')
            for i in range(4):
                a(f'    v_fma_f32 v{c+i}, v{c+i}, v{gr+i}, v{8+i}')
    C0 = g.acc(0, 0)
    a(f'    v_add_f32 v8, v{C0}, v{C0+1}\n    v_mul_f32 v9, v{C0}, v{C0}\n    v_add_f32 v10, v{C0+2}, v{C0+3}\n    v_mul_f32 v11, v{C0+1}, v{C0+1}')
    a(f'    v_fmac_f32 v9, v{C0+2}, v{C0+2}\n    v_fmac_f32 v11, v{C0+3}, v{C0+3}')
    for i in range(4, 32, 2):
        a(f'    v_add_f32 v8, v8, v{C0+i}\n    v_add_f32 v10, v10, v{C0+i+1}\n    v_fmac_f32 v9, v{C0+i}, v{C0+i}\n    v_fmac_f32 v11, v{C0+i+1}, v{C0+i+1}')
    a('    v_add_f32 v8, v8, v10\n    v_add_f32 v9, v9, v11\n    v_mov_b32 v10, v8\n    v_mov_b32 v11, v9')
    a('    v_permlane32_swap_b32 v8, v10\n    v_permlane32_swap_b32 v9, v11')
    a('    v_add_f32 v8, v8, v10\n    v_add_f32 v9, v9, v11')
    a('    s_lshl_b32 s58, s40, 13\n    s_lshl_b32 s59, s53, 3\n    s_add_u32 s58, s58, s59')
    a('    s_lshl_b32 s59, s41, 1\n    s_add_u32 s59, s59, s54\n    s_lshl_b32 s59, s59, 9\n    s_add_u32 s59, s59, s58')
    a('    v_lshlrev_b32 v7, 3, v3')
    a('    s_mov_b64 exec, 0xffffffff')
    a('    buffer_store_dwordx2 v[8:9], v7, s[36:39], s59 offen sc0 sc1')
    a('    s_mov_b64 exec, -1')
    for i in range(16):
        a(f'    v_cvt_pk_bf16_f32 v{XR+i}, v{C0+2*i}, v{C0+2*i+1}')
    a('    s_lshl_b32 s60, s40, 3\n    s_add_u32 s60, s60, s41\n    s_lshl_b32 s60, s60, 2\n    s_add_u32 s60, s60, s42\n    s_lshl_b32 s60, s60, 12')
    a('    v_lshlrev_b32 v5, 4, v1')
    for i in range(4):
        a(f'    buffer_store_dwordx4 v[{XR+4*i}:{XR+4*i+3}], v5, s[28:31], s60 offen offset:{1024*i}')
    for b in range(2):
        for j in range(4):
            r = 48 + (b*4+j)*4
            a(f'    ds_read_b128 v[{r}:{r+3}], v6 offset:{512 + b*128 + j*32}')
    a('    v_lshl_add_u32 v7, v4, 12, v7')
    a(f'    s_mov_b32 s61, {SPIN_MAX}')
    a(f'{n}_poll:')
    for i in range(8):
        a(f'    buffer_load_dwordx2 v[{80+2*i}:{81+2*i}], v7, s[36:39], s58 offen offset:{512*i} sc0 sc1')
    a('    s_waitcnt vmcnt(0)')
    a('    v_max3_u32 v8, v81, v83, v85\n    v_max3_u32 v9, v87, v89, v91\n    v_max3_u32 v8, v8, v93, v95\n    v_max_u32 v8, v8, v9')
    a('    v_cmp_eq_u32 vcc, -1, v8')
    a(f'    s_sub_u32 s61, s61, 1\n    s_cmp_eq_u32 s61, 0\n    s_cbranch_scc1 {n}_polled')
    a(f'    s_cbranch_vccnz {n}_poll')
    a(f'{n}_polled:')
    a('    v_add_f32 v80, v80, v82\n    v_add_f32 v81, v81, v83\n    v_add_f32 v84, v84, v86\n    v_add_f32 v85, v85, v87')
    a('    v_add_f32 v88, v88, v90\n    v_add_f32 v89, v89, v91\n    v_add_f32 v92, v92, v94\n    v_add_f32 v93, v93, v95')
    a('    v_add_f32 v80, v80, v84\n    v_add_f32 v81, v81, v85\n    v_add_f32 v88, v88, v92\n    v_add_f32 v89, v89, v93')
    a('    v_add_f32 v8, v80, v88\n    v_add_f32 v9, v81, v89\n    v_mov_b32 v10, v8\n    v_mov_b32 v11, v9')
    a('    v_permlane32_swap_b32 v8, v10\n    v_permlane32_swap_b32 v9, v11')
    a('    v_add_f32 v8, v8, v10\n    v_add_f32 v9, v9, v11')
    ln_finish(a, 8, 9, 1024)
    for i in range(32):
        a(f'    v_fma_f32 v{C0+i}, v{C0+i}, v9, v8')
    a('    s_waitcnt lgkmcnt(0)')
    for i in range(32):
        a(f'    v_mul_f32 v{C0+i}, v{C0+i}, v{48+i}')
    for b in range(2):
        for j in range(4):
            r = 48 + (b*4+j)*4
            a(f'    ds_read_b128 v[{r}:{r+3}], v6 offset:{1024 + b*128 + j*32}')
    a('    s_lshl_b32 s60, s41, 1\n    s_add_u32 s60, s60, s54\n    s_lshl_b32 s60, s60, 18\n    s_lshl_b32 s59, s56, 4\n    s_add_u32 s60, s60, s59')
    a('    v_lshlrev_b32 v5, 15, v4\n    v_lshl_add_u32 v5, v3, 4, v5')
    a('    s_waitcnt lgkmcnt(0)')
    for i in range(32):
        a(f'    v_add_f32 v{C0+i}, v{C0+i}, v{48+i}')
    for b in range(2):
        pack_swap32(a, g.acc(0, b), 80 + 8*b)
        for jj in range(2):
            a(f'    buffer_store_dwordx4 v[{80+8*b+4*jj}:{83+8*b+4*jj}], v5, s[32:35], s60 offen')
            a(f'    s_add_u32 s60, s60, 65536')
    if common.TIMING:
        a('    s_waitcnt vmcnt(0)'); tstamp(a, 86); twrite(a, 4, [80, 82, 84, 86], p['ws'])
    a('    s_endpgm')
    g.loader(12, 16, 50, 51)
    return g.k

def ln_finish(a, vs, vq, n):
    a(f'    v_mul_f32 v{vs}, {f2i(1/n)}, v{vs}\n    v_mul_f32 v{vq}, {f2i(1/n)}, v{vq}')
    a(f'    v_fma_f32 v{vq}, -v{vs}, v{vs}, v{vq}\n    v_max_f32 v{vq}, 0, v{vq}')
    a(f'    v_add_f32 v{vq}, {f2i(1e-5)}, v{vq}\n    v_rsq_f32 v{vq}, v{vq}')
    a(f'    v_mul_f32 v{vs}, v{vs}, v{vq}\n    v_sub_f32 v{vs}, 0, v{vs}')

def gelu(a, regs, T, sc1, sc2):
    n = len(regs)
    pr = lambda r: f'v[{r}:{r+1}]'
    for i in range(0, n, 2): a(f'    v_pk_mul_f32 {pr(T+i)}, {pr(regs[i])}, {pr(regs[i])}')
    for i in range(0, n, 2): a(f'    v_pk_fma_f32 {pr(T+i)}, {pr(T+i)}, s[{sc2}:{sc2+1}], v[{sc1}:{sc1+1}]')
    for i in range(0, n, 2): a(f'    v_pk_mul_f32 {pr(T+i)}, {pr(T+i)}, {pr(regs[i])}')
    for i in range(n): a(f'    v_exp_f32 v{T+i}, v{T+i}')
    for i in range(0, n, 2): a(f'    v_pk_add_f32 {pr(T+i)}, {pr(T+i)}, 1.0 op_sel_hi:[1,0]')
    for i in range(n): a(f'    v_rcp_f32 v{T+i}, v{T+i}')
    for i in range(0, n, 2): a(f'    v_pk_mul_f32 {pr(regs[i])}, {pr(T+i)}, {pr(regs[i])}')

def k_win(BK=64, NS=3):
    g = G('win', 128, 224, 1024, BK, NS, 16, 4, 7, dict(kind='c8'),
          dict(kind='tr', mode='win', ngroups=3, half=True, pitch=7168, gcol=[0, 128, 256]), (2, 4, 8, 4), vgpr=256)
    a = g.a; n = g.name
    tstamp(a, 80)
    p = load_ptrs(a, ['ws', 'win'], 4)
    g.tile_ids()
    a('    s_and_b32 s55, s41, 1     ; odd')
    a('    s_lshl_b32 s50, s40, 11\n    s_mul_i32 s51, s41, 448\n    s_cmp_eq_u32 s55, 1\n    s_cselect_b32 s52, 0, 384\n    s_add_u32 s52, s52, s51')
    a('    s_lshl_b32 s56, s55, 6\n    s_add_u32 s51, s51, s56')
    a('    s_waitcnt lgkmcnt(0)')
    srd_ws(a, 12, p['ws'], 'H2'); srd_in(a, 16, p['win'], 'win')
    dispatch(g)
    srd_ws(a, 20, p['ws'], 'Z1'); srd_ws(a, 24, p['ws'], 'Z2'); srd_ws(a, 36, p['ws'], 'STAT2')
    a('    s_and_b32 s54, s42, 1\n    s_lshr_b32 s53, s42, 1\n    s_lshl_b32 s53, s53, 6')
    g.setup_regs(ACC=16, FR=128, AD=216)
    g.addr_setup(53, 54)
    g.mainloop()
    a('    s_mul_i32 s56, s54, 6\n    s_lshl_b32 s57, s55, 1\n    s_add_u32 s56, s56, s57')
    for i in range(6): a(f'    s_add_u32 s{64+i}, s56, {i}')
    a('    s_cmp_eq_u32 s55, 1\n    s_cselect_b32 s57, 0, 12\n    s_add_u32 s70, s54, s57')
    c1 = -2*(2/3.141592653589793)**0.5*LOG2E
    a(f'    v_mov_b32 v12, {f2i(c1)}\n    v_mov_b32 v13, {f2i(c1)}\n    s_mov_b32 s72, {f2i(c1*0.044715)}\n    s_mov_b32 s73, {f2i(c1*0.044715)}')
    a('    v_lshlrev_b32 v5, 4, v1')
    a(f'    s_cmp_ge_u32 s41, 8\n    s_cbranch_scc1 {n}_z2')
    a('    s_lshl_b32 s56, s40, 2\n    s_lshr_b32 s57, s53, 5\n    s_add_u32 s56, s56, s57\n    s_mul_i32 s56, s56, 112\n    s_mul_i32 s57, s41, 14\n    s_add_u32 s56, s56, s57')
    for i in range(7): a(f'    s_add_u32 s{64+i}, s{64+i}, s56\n    s_lshl_b32 s{64+i}, s{64+i}, 10')
    T = 128
    for pair in range(2):
        for fb in range(7):
            regs = list(range(g.acc(2*pair, fb), g.acc(2*pair, fb)+4)) + list(range(g.acc(2*pair+1, fb), g.acc(2*pair+1, fb)+4))
            gelu(a, regs, T, 12, 72)
            d = T + 8
            for j in range(4): a(f'    v_cvt_pk_bf16_f32 v{d+j}, v{regs[2*j]}, v{regs[2*j+1]}')
            a(f'    buffer_store_dwordx4 v[{d}:{d+3}], v5, s[20:23], s{64+fb} offen')
            if pair == 0: a(f'    s_add_u32 s{64+fb}, s{64+fb}, {112*1024}')
            T = 128 + (T - 128 + 12) % 48
    if common.TIMING:
        a('    s_waitcnt vmcnt(0)'); tstamp(a, 86); twrite(a, 5, [80, 82, 84, 86], p['ws'])
    a('    s_endpgm')
    a(f'{n}_z2:')
    T = 128
    for tb in range(4):
        regs = list(range(g.acc(tb, 0), g.acc(tb, 0)+28))
        gelu(a, regs, T, 12, 72)
        s, q = 160+2*tb, 161+2*tb
        pr = lambda r: f'v[{r}:{r+1}]'
        a(f'    v_pk_add_f32 v[168:169], {pr(regs[0])}, {pr(regs[2])}\n    v_pk_mul_f32 v[170:171], {pr(regs[0])}, {pr(regs[0])}')
        a(f'    v_pk_fma_f32 v[170:171], {pr(regs[2])}, {pr(regs[2])}, v[170:171]')
        for i in range(4, 28, 2):
            a(f'    v_pk_add_f32 v[168:169], v[168:169], {pr(regs[i])}\n    v_pk_fma_f32 v[170:171], {pr(regs[i])}, {pr(regs[i])}, v[170:171]')
        a(f'    v_add_f32 v{s}, v168, v169\n    v_add_f32 v{q}, v170, v171')
    for tb in range(4): a(f'    v_permlane16_swap_b32 v{160+2*tb}, v{161+2*tb}')
    for tb in range(4): a(f'    v_add_f32 v{160+2*tb}, v{160+2*tb}, v{161+2*tb}')
    a('    v_permlane32_swap_b32 v160, v162\n    v_permlane32_swap_b32 v164, v166')
    a('    v_add_f32 v160, v160, v162\n    v_add_f32 v161, v164, v166')
    a('    v_permlane16_swap_b32 v160, v161')
    a('    v_lshrrev_b32 v6, 4, v1\n    v_lshrrev_b32 v7, 1, v6\n    v_and_b32 v6, 1, v6\n    v_lshl_add_u32 v6, v6, 1, v7')
    a('    v_and_b32 v3, 15, v1\n    v_lshl_add_u32 v6, v6, 4, v3\n    v_lshlrev_b32 v6, 3, v6')
    a('    s_lshl_b32 s58, s40, 14\n    s_lshl_b32 s59, s53, 3\n    s_add_u32 s58, s58, s59')
    a('    s_sub_u32 s59, s41, 8\n    s_lshl_b32 s59, s59, 1\n    s_add_u32 s59, s59, s54\n    s_lshl_b32 s59, s59, 10\n    s_add_u32 s59, s59, s58')
    a('    buffer_store_dwordx2 v[160:161], v6, s[36:39], s59 offen sc0 sc1')
    a('    s_sub_u32 s56, s41, 8\n    s_lshl_b32 s56, s56, 6\n    s_lshl_b32 s57, s40, 1\n    s_add_u32 s56, s56, s57\n    s_lshr_b32 s57, s53, 6\n    s_add_u32 s56, s56, s57\n    s_mul_i32 s56, s56, 7')
    for i in range(7):
        r = 64+i
        a(f'    s_cmp_ge_u32 s{r}, 7\n    s_cselect_b32 s57, {32*7-7}, 0\n    s_add_u32 s{r}, s{r}, s57\n    s_add_u32 s{r}, s{r}, s56\n    s_lshl_b32 s{r}, s{r}, 11')
    a('    v_and_b32 v7, 3, v1\n    v_bfe_u32 v8, v1, 2, 1\n    v_lshl_add_u32 v7, v8, 3, v7\n    v_bfe_u32 v8, v1, 3, 1\n    v_lshl_add_u32 v7, v8, 2, v7')
    a('    v_bfe_u32 v8, v1, 4, 1\n    v_lshl_add_u32 v7, v8, 4, v7\n    v_lshlrev_b32 v7, 5, v7\n    v_lshrrev_b32 v8, 5, v1\n    v_lshl_add_u32 v7, v8, 4, v7')
    a('    v_lshlrev_b32 v6, 3, v1\n    v_add_u32 v9, 4096, v6\n    v_add_u32 v10, 8192, v6\n    v_add_u32 v11, 12288, v6')
    a(f'    s_mov_b32 s61, {SPIN_MAX}')
    a(f'{n}_poll:')
    for i in range(16):
        a(f'    buffer_load_dwordx2 v[{128+2*i}:{129+2*i}], v{[6,9,10,11][i//4]}, s[36:39], s58 offen offset:{1024*(i%4)} sc0 sc1')
    a('    s_waitcnt vmcnt(0)')
    a('    v_max3_u32 v8, v129, v131, v133')
    for i in range(3, 15, 2): a(f'    v_max3_u32 v8, v8, v{129+2*i}, v{131+2*i}')
    a('    v_max_u32 v8, v8, v159')
    a('    v_cmp_eq_u32 vcc, -1, v8')
    a(f'    s_sub_u32 s61, s61, 1\n    s_cmp_eq_u32 s61, 0\n    s_cbranch_scc1 {n}_polled')
    a(f'    s_cbranch_vccnz {n}_poll')
    a(f'{n}_polled:')
    for w in (8, 4, 2, 1):
        for i in range(w): a(f'    v_pk_add_f32 v[{128+2*i}:{129+2*i}], v[{128+2*i}:{129+2*i}], v[{128+2*(i+w)}:{129+2*(i+w)}]')
    ln_finish(a, 128, 129, 1792)
    a('    v_lshlrev_b32 v3, 2, v3')
    for tb in range(4):
        a(f'    ds_bpermute_b32 v{132+4*tb}, v3, v128 offset:{64*tb}')
        a(f'    ds_bpermute_b32 v{134+4*tb}, v3, v129 offset:{64*tb}')
    a('    s_waitcnt lgkmcnt(0)')
    for tb in range(4):
        a(f'    v_mov_b32 v{133+4*tb}, v{132+4*tb}\n    v_mov_b32 v{135+4*tb}, v{134+4*tb}')
    T = 160
    for pair in range(2):
        for fb in range(7):
            for t2 in range(2):
                tb = 2*pair+t2; c = g.acc(tb, fb)
                for i in (0, 2):
                    a(f'    v_pk_fma_f32 v[{c+i}:{c+i+1}], v[{c+i}:{c+i+1}], v[{134+4*tb}:{135+4*tb}], v[{132+4*tb}:{133+4*tb}]')
            for t2 in range(2):
                tb = 2*pair+t2; c = g.acc(tb, fb)
                a(f'    v_cvt_pk_bf16_f32 v{T+2*t2}, v{c}, v{c+1}\n    v_cvt_pk_bf16_f32 v{T+2*t2+1}, v{c+2}, v{c+3}')
            a(f'    v_permlane16_swap_b32 v{T}, v{T+2}\n    v_permlane16_swap_b32 v{T+1}, v{T+3}')
            a(f'    buffer_store_dwordx4 v[{T}:{T+3}], v7, s[24:27], s{64+fb} offen offset:{1024*pair}')
            T = 160 + (T - 160 + 4) % 16
    if common.TIMING:
        a('    s_waitcnt vmcnt(0)'); tstamp(a, 86); twrite(a, 5, [80, 82, 84, 86], p['ws'])
    a('    s_endpgm')
    g.loader(12, 16, 50, 51, 52)
    return g.k

def k_wsp(NS=5, xmap=(4, 2, 4, 8)):
    g = G('wsp', 128, 112, 2048, 64, NS, 16, 2, 7, dict(kind='rows', pitch=4096),
          dict(kind='lin', mode='wsp'), xmap, vgpr=192)
    a = g.a; n = g.name
    tstamp(a, 80)
    p = load_ptrs(a, ['ws', 'wsp', 'bsp'], 4)
    g.tile_ids()
    a(f'    s_lshl_b32 s50, s40, 19\n    s_mul_i32 s51, s41, {32*14336}')
    a('    s_waitcnt lgkmcnt(0)')
    srd_in(a, 12, p['wsp'], 'wsp'); srd_ws(a, 16, p['ws'], 'Z2')
    dispatch(g)
    srd_ws(a, 20, p['ws'], 'Z1'); srd_in(a, 24, p['bsp'], 'bsp'); srd_ws(a, 28, p['ws'], 'Y')
    a('    s_mov_b32 s54, 0\n    s_lshl_b32 s53, s42, 5')
    ZR = 156
    a('    s_lshl_b32 s56, s40, 2\n    s_add_u32 s56, s56, s42\n    s_mul_i32 s57, s56, 112\n    s_mul_i32 s58, s41, 7\n    s_add_u32 s57, s57, s58\n    s_lshl_b32 s57, s57, 10')
    a('    v_lshlrev_b32 v5, 4, v1\n    v_add_u32 v6, 4096, v5')
    for fb in range(7):
        a(f'    buffer_load_dwordx4 v[{ZR+4*fb}:{ZR+4*fb+3}], v{5 if fb < 4 else 6}, s[20:23], s57 offen offset:{1024*(fb%4)}')
    a('    s_lshl_b32 s58, s56, 6\n    v_and_b32 v7, 15, v1\n    v_lshlrev_b32 v7, 1, v7')
    a('    buffer_load_ushort v184, v7, s[24:27], s58 offen\n    buffer_load_ushort v185, v7, s[24:27], s58 offen offset:32')
    g.setup_regs(ACC=16, FR=72, AD=144)
    g.addr_setup(53, 54)
    g.mainloop()
    a(f'    s_mul_i32 s57, s41, {14*32768}\n    s_lshl_b32 s58, s56, 9\n    s_add_u32 s57, s57, s58')
    a('    v_and_b32 v3, 31, v1\n    v_lshrrev_b32 v4, 5, v1\n    v_lshlrev_b32 v4, 15, v4\n    v_lshl_add_u32 v3, v3, 4, v4')
    a('    s_waitcnt vmcnt(0)')
    a('    v_lshlrev_b32 v184, 16, v184\n    v_lshlrev_b32 v185, 16, v185')
    T = 72
    for fb in range(7):
        for tb in range(2):
            c = g.acc(tb, fb); z = ZR + 4*fb + 2*tb
            a(f'    v_lshlrev_b32 v8, 16, v{z}\n    v_and_b32 v9, 0xffff0000, v{z}\n    v_lshlrev_b32 v10, 16, v{z+1}\n    v_and_b32 v11, 0xffff0000, v{z+1}')
            for i in range(4): a(f'    v_add_f32 v{c+i}, v{c+i}, v{184+tb}')
            for i in range(4): a(f'    v_mul_f32 v{c+i}, v{c+i}, v{8+i}')
            a(f'    v_cvt_pk_bf16_f32 v{T+2*tb}, v{c}, v{c+1}\n    v_cvt_pk_bf16_f32 v{T+2*tb+1}, v{c+2}, v{c+3}')
        a(f'    v_permlane16_swap_b32 v{T}, v{T+2}\n    v_permlane16_swap_b32 v{T+1}, v{T+3}')
        a(f'    buffer_store_dwordx4 v[{T}:{T+3}], v3, s[28:31], s57 offen')
        a('    s_add_u32 s57, s57, 65536')
        T = 72 + (T - 72 + 4) % 16
    if common.TIMING:
        a('    s_waitcnt vmcnt(0)'); tstamp(a, 86); twrite(a, 6, [80, 82, 84, 86], p['ws'])
    a('    s_endpgm')
    g.loader(12, 16, 50, 51)
    return g.k

def k_wout(NS=6, xmap=(4, 2, 8, 4)):
    g = G('wout', 64, 128, 1792, 64, NS, 32, 1, 2, dict(kind='c8'),
          dict(kind='tr', mode='grp', ngroups=2, pitch=2048, gcol=[0, 128]), xmap, extra_lds=512, vgpr=128)
    a = g.a; n = g.name
    tstamp(a, 80)
    p = load_ptrs(a, ['ws', 'wout', 'out'], 4)
    g.tile_ids()
    a('    s_lshl_b32 s50, s40, 10\n    s_lshl_b32 s51, s41, 8')
    a('    s_waitcnt lgkmcnt(0)')
    srd_ws(a, 12, p['ws'], 'Y'); srd_in(a, 16, p['wout'], 'wout')
    dispatch(g)
    srd_in(a, 20, p['out'], 'out'); srd_ws(a, 24, p['ws'], 'MODF'); srd_ws(a, 28, p['ws'], 'X1')
    a('    s_and_b32 s54, s42, 1\n    s_lshr_b32 s53, s42, 1\n    s_lshl_b32 s53, s53, 5')
    VL = g.ring
    stage_vecs(g, 24, [5], VL)
    XR = 96
    a('    s_lshl_b32 s60, s40, 3\n    s_add_u32 s60, s60, s41\n    s_lshl_b32 s60, s60, 2\n    s_add_u32 s60, s60, s42\n    s_lshl_b32 s60, s60, 12')
    a('    v_lshlrev_b32 v5, 4, v1')
    for i in range(4):
        a(f'    buffer_load_dwordx4 v[{XR+4*i}:{XR+4*i+3}], v5, s[28:31], s60 offen offset:{1024*i}')
    g.setup_regs(ACC=16, FR=48, AD=72)
    g.addr_setup(53, 54)
    g.mainloop()
    a('    v_and_b32 v3, 31, v1\n    v_lshrrev_b32 v4, 5, v1')
    a(f'    s_lshl_b32 s58, s54, 8\n    s_add_u32 s58, s58, {VL}\n    v_lshl_add_u32 v6, v4, 4, s58')
    for b in range(2):
        for j in range(4):
            r = 48 + (b*4+j)*4
            a(f'    ds_read_b128 v[{r}:{r+3}], v6 offset:{b*128 + j*32}')
    scr = ((g.nsteps) % g.NS)*g.SZ
    a(f'    s_lshl_b32 s58, s42, 12\n    s_add_u32 s58, s58, {scr}')
    a('    v_and_b32 v7, 7, v3\n    v_xor_b32 v7, v7, v4\n    v_lshlrev_b32 v12, 7, v3\n    v_add_u32 v12, s58, v12')
    a('    v_lshrrev_b32 v13, 3, v1\n    v_and_b32 v14, 7, v1\n    v_xor_b32 v15, v14, v13\n    v_lshlrev_b32 v15, 4, v15\n    v_lshl_add_u32 v15, v13, 7, v15\n    v_add_u32 v15, s58, v15')
    a('    v_lshlrev_b32 v13, 11, v13\n    v_lshl_add_u32 v13, v14, 4, v13')
    a('    s_lshl_b32 s56, s40, 6\n    s_add_u32 s56, s56, s53\n    s_lshl_b32 s57, s56, 11\n    s_lshl_b32 s59, s41, 8\n    s_add_u32 s57, s57, s59\n    s_lshl_b32 s59, s54, 7\n    s_add_u32 s57, s57, s59')
    a('    s_waitcnt vmcnt(0)')
    for b in range(2):
        for j in range(4):
            idx = b*4+j
            if b == 0: a(f'    s_waitcnt lgkmcnt({7-idx})')
            elif j == 0: a('    s_waitcnt lgkmcnt(2)')
            xr = XR + idx*2; gr = 48 + idx*4; c = g.acc(0, b) + 4*j
            a(f'    v_lshlrev_b32 v8, 16, v{xr}\n    v_and_b32 v9, 0xffff0000, v{xr}\n    v_lshlrev_b32 v10, 16, v{xr+1}\n    v_and_b32 v11, 0xffff0000, v{xr+1}')
            for i in range(4):
                a(f'    v_fma_f32 v{c+i}, v{c+i}, v{gr+i}, v{8+i}')
        pack_swap32(a, g.acc(0, b), 80 + 8*b)
        for jj in range(2):
            a(f'    v_xor_b32 v14, {4*b + 2*jj}, v7\n    v_lshl_add_u32 v14, v14, 4, v12')
            a(f'    ds_write_b128 v14, v[{80+8*b+4*jj}:{83+8*b+4*jj}]')
    a('    s_waitcnt lgkmcnt(0)')
    for i in range(4):
        a(f'    ds_read_b128 v[{48+4*i}:{51+4*i}], v15 offset:{1024*i}')
    for i in range(4):
        a(f'    s_waitcnt lgkmcnt({3-i})')
        a(f'    buffer_store_dwordx4 v[{48+4*i}:{51+4*i}], v13, s[20:23], s57 offen')
        a(f'    s_add_u32 s57, s57, {8*2048}')
    if common.TIMING:
        a('    s_waitcnt vmcnt(0)'); tstamp(a, 86); twrite(a, 7, [80, 82, 84, 86], p['ws'])
    a('    s_endpgm')
    g.loader(12, 16, 50, 51)
    return g.k
```

```python
from common import *
import common

def k_mod():
    k = Kernel('mod_kernel', 256, 512, 2048, 64)
    a = k.a
    p = load_ptrs(a, ['c', 'wmod', 'ws', 'x'], 4)
    a('    v_and_b32 v1, 63, v0\n    v_lshrrev_b32 v2, 6, v0')
    a('    s_cmp_ge_u32 s2, 192\n    s_cbranch_scc1 mod_side')
    a('    v_readfirstlane_b32 s20, v2          ; wave')
    a('    s_cmp_ge_u32 s2, 96\n    s_cselect_b32 s21, 1, 0\n    s_mul_i32 s22, s21, 96\n    s_sub_u32 s22, s2, s22')
    a('    s_waitcnt lgkmcnt(0)')
    srd_in(a, 12, p['c'], 'c'); srd_in(a, 16, p['wmod'], 'wmod'); srd_ws(a, 24, p['ws'], 'MODP')
    a('    s_lshl_b32 s23, s21, 9\n    s_lshl_b32 s28, s20, 6\n    s_add_u32 s23, s23, s28')
    a('    v_lshrrev_b32 v3, 3, v1\n    v_lshlrev_b32 v3, 3, v3\n    v_add_u32 v3, s23, v3   ; row0')
    a('    v_lshlrev_b32 v4, 1, v3\n    buffer_load_dwordx4 v[8:11], v4, s[12:15], 0 offen')
    a('    v_mul_u32_u24 v5, 12288, v3\n    v_and_b32 v6, 7, v1\n    v_lshl_add_u32 v5, v6, 4, v5')
    a('    s_lshl_b32 s29, s22, 7')
    for i in range(8):
        a(f'    buffer_load_dwordx4 v[{32+4*i}:{35+4*i}], v5, s[16:19], s29 offen nt')
        if i < 7: a('    s_add_u32 s29, s29, 12288')
    a('    s_waitcnt vmcnt(8)')
    for j in range(4):
        a(f'    v_lshlrev_b32 v{12+2*j}, 16, v{8+j}\n    v_and_b32 v{13+2*j}, 0xffff0000, v{8+j}')
    for j in range(8):
        a(f'    v_mul_f32 v{20+j}, {f2i(-LOG2E)}, v{12+j}')
    for j in range(8): a(f'    v_exp_f32 v{20+j}, v{20+j}')
    for j in range(8): a(f'    v_add_f32 v{20+j}, 1.0, v{20+j}')
    for j in range(8): a(f'    v_rcp_f32 v{20+j}, v{20+j}')
    for j in range(8): a(f'    v_mul_f32 v{12+j}, v{12+j}, v{20+j}')
    for i in range(8):
        a(f'    s_waitcnt vmcnt({7-i})')
        for j in range(4):
            w = 32+4*i+j
            a(f'    v_lshlrev_b32 v28, 16, v{w}\n    v_and_b32 v29, 0xffff0000, v{w}')
            if i == 0:
                a(f'    v_mul_f32 v{20+2*j}, v{12+i}, v28\n    v_mul_f32 v{21+2*j}, v{12+i}, v29')
            else:
                a(f'    v_fmac_f32 v{20+2*j}, v{12+i}, v28\n    v_fmac_f32 v{21+2*j}, v{12+i}, v29')
    for j in range(8):
        a(f'    v_add_f32_dpp v{20+j}, v{20+j}, v{20+j} row_ror:8 row_mask:0xf bank_mask:0xf')
    for j in range(0, 8, 2):
        a(f'    v_permlane16_swap_b32 v{20+j}, v{21+j}')
    for j in range(0, 8, 2):
        a(f'    v_add_f32 v{20+j}, v{20+j}, v{21+j}')
    a('    v_permlane32_swap_b32 v20, v22\n    v_permlane32_swap_b32 v24, v26')
    a('    v_add_f32 v20, v20, v22\n    v_add_f32 v24, v24, v26')
    a('    v_lshrrev_b32 v7, 4, v1\n    v_lshl_add_u32 v7, v6, 3, v7\n    v_lshlrev_b32 v7, 2, v7')
    a('    s_lshl_b32 s28, s20, 8\n    v_add_u32 v7, s28, v7')
    a('    ds_write_b32 v7, v20\n    ds_write_b32 v7, v24 offset:16')
    a('    s_waitcnt lgkmcnt(0)\n    s_barrier')
    a('    s_cmp_lg_u32 s20, 0\n    s_cbranch_scc1 mod_kernel_exit')
    a('    v_lshlrev_b32 v7, 2, v1')
    for w in range(8): a(f'    ds_read_b32 v{8+w}, v7 offset:{256*w}')
    a('    s_mul_i32 s28, s21, 24576\n    s_lshl_b32 s29, s22, 8\n    s_add_u32 s28, s28, s29')
    a('    s_waitcnt lgkmcnt(0)')
    a('    v_add_f32 v8, v8, v9\n    v_add_f32 v10, v10, v11\n    v_add_f32 v12, v12, v13\n    v_add_f32 v14, v14, v15')
    a('    v_add_f32 v8, v8, v10\n    v_add_f32 v12, v12, v14\n    v_add_f32 v8, v8, v12')
    a('    buffer_store_dword v8, v7, s[24:27], s28 offen')
    a('    s_endpgm')
    a('mod_side:')
    a('    s_waitcnt lgkmcnt(0)')
    srd_in(a, 12, p['x'], 'x'); srd_ws(a, 16, p['ws'], 'STAT1', size=WS['STAT1'][1]+WS['STAT2'][1])
    a('    s_sub_u32 s20, s2, 192\n    s_lshl_b32 s21, s20, 16\n    v_lshlrev_b32 v3, 4, v0')
    for i in range(8):
        a(f'    buffer_load_dwordx4 v[{32+4*i}:{35+4*i}], v3, s[12:15], s21 offen')
        if i < 7: a('    s_add_u32 s21, s21, 8192')
    a('    v_mov_b32 v8, -1\n    v_mov_b32 v9, -1\n    v_mov_b32 v10, -1\n    v_mov_b32 v11, -1')
    a('    s_lshl_b32 s21, s20, 13')
    a('    buffer_store_dwordx4 v[8:11], v3, s[16:19], s21 offen')
    a('    s_waitcnt vmcnt(0)')
    return k

def k_h1():
    k = Kernel('h1_kernel', 256, 256, 8192+512, 96)
    a = k.a
    p = load_ptrs(a, ['x', 'ws', 'wqkv'], 4)
    a('    v_and_b32 v1, 63, v0\n    v_lshrrev_b32 v2, 6, v0')
    a('    v_and_b32 v3, 7, v1          ; token\n    v_lshrrev_b32 v4, 3, v1')
    a('    v_lshl_add_u32 v4, v2, 5, v4')
    a('    v_readfirstlane_b32 s20, v2')
    a('    v_lshlrev_b32 v5, 11, v3\n    v_lshl_add_u32 v5, v4, 4, v5   ; x off')
    a('    s_lshl_b32 s21, s2, 14')
    a('    v_lshlrev_b32 v6, 4, v0')
    a('    s_waitcnt lgkmcnt(0)')
    srd_in(a, 12, p['x'], 'x'); srd_ws(a, 16, p['ws'], 'MODP'); srd_ws(a, 24, p['ws'], 'H1'); srd_in(a, 28, p['wqkv'], 'wqkv')
    srd_ws(a, 32, p['ws'], 'MODF')
    for i in range(4):
        a(f'    buffer_load_dwordx4 v[{8+4*i}:{11+4*i}], v5, s[12:15], s21 offen offset:{128*i}')
    a('    s_mov_b32 s22, 24576\n    s_mov_b32 s23, 4096\n    s_mov_b32 s36, 28672')
    a('    buffer_load_dwordx4 v[24:27], v6, s[16:19], 0 offen')
    a('    buffer_load_dwordx4 v[28:31], v6, s[16:19], s22 offen')
    a('    buffer_load_dwordx4 v[32:35], v6, s[16:19], s23 offen')
    a('    buffer_load_dwordx4 v[36:39], v6, s[16:19], s36 offen')
    a('    s_cmp_ge_u32 s2, 6\n    s_cbranch_scc1 h1_nofin')
    a('    s_lshl_b32 s37, s2, 12\n    s_add_u32 s38, s37, 24576')
    a('    buffer_load_dwordx4 v[40:43], v6, s[16:19], s37 offen')
    a('    buffer_load_dwordx4 v[44:47], v6, s[16:19], s38 offen')
    a('    s_cmp_eq_u32 s2, 1\n    s_cselect_b32 s39, 1.0, 0\n    s_cmp_eq_u32 s2, 4\n    s_cselect_b32 s39, 1.0, s39')
    a('    s_waitcnt vmcnt(0)')
    for j in range(4):
        a(f'    v_add_f32 v{40+j}, v{40+j}, v{44+j}')
    for j in range(4):
        a(f'    v_add_f32 v{40+j}, s39, v{40+j}')
    a('    buffer_store_dwordx4 v[40:43], v6, s[32:35], s37 offen')
    a('    s_waitcnt vmcnt(0)')
    a('h1_nofin:')
    a('    s_mul_i32 s37, s2, 24576')
    for i in range(6):
        a(f'    buffer_load_dwordx4 v[{64+4*i}:{67+4*i}], v6, s[28:31], s37 offen')
        if i < 5: a('    s_add_u32 s37, s37, 4096')
    a('    s_waitcnt vmcnt(10)')
    X = list(range(40, 64)) + list(range(88, 96))
    for i in range(16):
        a(f'    v_lshlrev_b32 v{X[2*i]}, 16, v{8+i}\n    v_and_b32 v{X[2*i+1]}, 0xffff0000, v{8+i}')
    a(f'    v_add_f32 v8, v{X[0]}, v{X[1]}\n    v_mul_f32 v9, v{X[0]}, v{X[0]}\n    v_add_f32 v10, v{X[2]}, v{X[3]}\n    v_mul_f32 v11, v{X[1]}, v{X[1]}')
    a(f'    v_fmac_f32 v9, v{X[2]}, v{X[2]}\n    v_fmac_f32 v11, v{X[3]}, v{X[3]}')
    for i in range(4, 32, 2):
        a(f'    v_add_f32 v8, v8, v{X[i]}\n    v_add_f32 v10, v10, v{X[i+1]}\n    v_fmac_f32 v9, v{X[i]}, v{X[i]}\n    v_fmac_f32 v11, v{X[i+1]}, v{X[i+1]}')
    a('    v_add_f32 v8, v8, v10\n    v_add_f32 v9, v9, v11')
    a('    v_add_f32_dpp v8, v8, v8 row_ror:8 row_mask:0xf bank_mask:0xf')
    a('    v_add_f32_dpp v9, v9, v9 row_ror:8 row_mask:0xf bank_mask:0xf')
    a('    v_permlane16_swap_b32 v8, v9\n    v_add_f32 v8, v8, v9\n    v_mov_b32 v9, v8')
    a('    v_permlane32_swap_b32 v8, v9\n    v_add_f32 v8, v8, v9')
    a('    v_lshrrev_b32 v10, 4, v1\n    v_and_b32 v10, 1, v10\n    v_lshlrev_b32 v10, 2, v10')
    a('    v_lshl_add_u32 v10, v3, 5, v10\n    v_lshl_add_u32 v10, v2, 3, v10')
    a('    ds_write_b32 v10, v8 offset:8192')
    a('    s_waitcnt vmcnt(6)')
    for j in range(4):
        a(f'    v_add_f32 v{24+j}, v{24+j}, v{28+j}\n    v_add_f32 v{32+j}, v{32+j}, v{36+j}')
    for j in range(4):
        a(f'    v_add_f32 v{32+j}, 1.0, v{32+j}')
    a('    ds_write_b128 v6, v[24:27]\n    ds_write_b128 v6, v[32:35] offset:4096')
    a('    s_waitcnt lgkmcnt(0)\n    s_barrier')
    a('    v_lshlrev_b32 v10, 5, v3')
    a('    ds_read_b128 v[12:15], v10 offset:8192\n    ds_read_b128 v[16:19], v10 offset:8208')
    a('    v_lshlrev_b32 v11, 5, v4')
    a('    v_lshlrev_b32 v5, 15, v4\n    v_lshl_add_u32 v5, v3, 4, v5')
    a('    s_lshl_b32 s21, s2, 7')
    a('    s_waitcnt lgkmcnt(0)')
    a('    v_add_f32 v12, v12, v14\n    v_add_f32 v13, v13, v15\n    v_add_f32 v16, v16, v18\n    v_add_f32 v17, v17, v19')
    a('    v_add_f32 v12, v12, v16\n    v_add_f32 v13, v13, v17')
    a(f'    v_mul_f32 v12, {f2i(1/1024)}, v12\n    v_mul_f32 v13, {f2i(1/1024)}, v13')
    a('    v_fma_f32 v13, -v12, v12, v13\n    v_max_f32 v13, 0, v13')
    a(f'    v_add_f32 v13, {f2i(1e-5)}, v13\n    v_rsq_f32 v13, v13')
    a('    v_mul_f32 v12, v12, v13\n    v_sub_f32 v12, 0, v12   ; -mu*r')
    for i in range(4):
        T, S = 16, 24
        a(f'    ds_read_b128 v[{T}:{T+3}], v11 offset:{256*i}\n    ds_read_b128 v[{T+4}:{T+7}], v11 offset:{256*i+16}')
        a(f'    ds_read_b128 v[{S}:{S+3}], v11 offset:{4096+256*i}\n    ds_read_b128 v[{S+4}:{S+7}], v11 offset:{4096+256*i+16}')
        for j in range(8):
            a(f'    v_fma_f32 v{X[8*i+j]}, v{X[8*i+j]}, v13, v12')
        a('    s_waitcnt lgkmcnt(0)')
        for j in range(8):
            a(f'    v_fma_f32 v{X[8*i+j]}, v{X[8*i+j]}, v{S+j}, v{T+j}')
        for j in range(4):
            a(f'    v_cvt_pk_bf16_f32 v{32+j}, v{X[8*i+2*j]}, v{X[8*i+2*j+1]}')
        a(f'    buffer_store_dwordx4 v[32:35], v5, s[24:27], s21 offen')
        if i < 3: a(f'    s_add_u32 s21, s21, {8*32768}')
    return k
```

```python
import sys
import common
from common import *
def build(timing=False, **kw):
    common.TIMING = timing
    import k_small, k_gemms, k_attn
    ks = [k_small.k_mod(), k_small.k_h1(), k_gemms.k_qkv(**kw.get('qkv', {})), k_attn.k_attn(**kw.get('attn', {})),
          k_gemms.k_wo(**kw.get('wo', {})), k_gemms.k_win(**kw.get('win', {})), k_gemms.k_wsp(**kw.get('wsp', {})),
          k_gemms.k_wout(**kw.get('wout', {}))]
    ref = open('adaLN_cond__mha_block__mixer_gmlp__prompt.s.ref').read().split('\n')
    head = [l for l in ref if l.startswith(';') and '@launch' not in l and 'Override' not in l and 'grid=ceil' not in l]
    out = '\n'.join(head) + '\n'
    for k in ks:
        out += f'; @launch kernel={k.name} grid=({k.grid},1,1) block=({k.block},1,1) lds={k.lds}\n'
    out += '.amdgcn_target "amdgcn-amd-amdhsa--gfx950"\n.text\n'
    for k in ks: out += k.finish()
    out += '.section .rodata,"a"\n'
    for k in ks: out += k.desc()
    return out
if __name__ == '__main__':
    dst = sys.argv[1] if len(sys.argv) > 1 else 'adaLN_cond__mha_block__mixer_gmlp__prompt.s'
    open(dst, 'w').write(build(timing='-t' in sys.argv))
    print('wrote', dst)
```
